```python
import torch

def _softmax(x, axis=-1):
    return torch.softmax(x, dim=axis)
def _gelu(x):
    return torch.nn.functional.gelu(x, approximate="tanh")
def _silu(x):
    return torch.nn.functional.silu(x)
def _sigmoid(x):
    return torch.sigmoid(x)
def _layernorm(x, axis=-1, eps=1e-5):
    m = x.mean(dim=axis, keepdim=True)
    v = x.var(dim=axis, keepdim=True, unbiased=False)
    return (x - m) / torch.sqrt(v + eps)
def _scatter_add(tgt, idx, src, axis=0):
    return tgt.clone().index_add_(axis, idx, src)
def _segment_sum(src, seg, n):
    out = torch.zeros((n,) + src.shape[1:], dtype=src.dtype)
    return out.index_add_(0, seg, src)
def _pad(x, pw):
    flat = tuple(v for pair in reversed(pw) for v in pair)
    return torch.nn.functional.pad(x, flat)

kernel_name = 'standalone__self_sup_conv_stem_wavlm__speech'

def setup_inputs():

    _w = (lambda a: (lambda t: t.to(torch.bfloat16) if t.is_floating_point() else t)(torch.as_tensor(a)))
    B, T, D, K = 2, 16000, 256, 3
    scale = (K * D) ** -0.5
    return {
        "x": _w((lambda *s: torch.randn(*s, dtype=torch.bfloat16) * 0.05)(B, T, D)),
        "w": _w((lambda *s: torch.randn(*s, dtype=torch.bfloat16) * 0.05)(K, D, D) * scale),
        "gn_gamma": _w((lambda *s: torch.randn(*s, dtype=torch.bfloat16) * 0.05)(D) * 0.1 + 1.0),
        "gn_beta": _w((lambda *s: torch.randn(*s, dtype=torch.bfloat16) * 0.05)(D) * 0.1),
    }

def reference(x, w, gn_gamma, gn_beta):
    B, T, D = x.shape
    K = w.shape[0]
    s = 2
    L = (T - K) // s + 1
    h = torch.einsum('blc,cd->bld', x[:, 0:s * L:s, :], w[0])
    for i in range(1, K):
        h = h + torch.einsum('blc,cd->bld', x[:, i:i + s * L:s, :], w[i])
    mu = torch.einsum('bld->bd', h)[:, None, :] / L
    var = torch.einsum('bld->bd', (h - mu) ** 2)[:, None, :] / L
    h = (h - mu) / torch.sqrt(var + 1e-5)
    h = h * gn_gamma[None, None, :] + gn_beta[None, None, :]
    return _gelu(h)
```

```python
import sys, math, struct, argparse

NAME = "standalone__self_sup_conv_stem_wavlm__speech"
L_OUT = 7999
TR = 127
NTILE = 63
XB_BATCH = 16000 * 512
X_BYTES = 2 * XB_BATCH
W_BYTES = 3 * 256 * 256 * 2
OUT_BYTES = 2 * L_OUT * 512
RING = 131072
PAR = 65536


def f2u(f):
    return struct.unpack("<I", struct.pack("<f", f))[0]


class Asm:
    def __init__(self):
        self.lines = []
        self.lab = 0

    def __call__(self, s):
        self.lines.append("    " + s)

    def label(self, n):
        self.lines.append(n + ":")

    def newlab(self, p="L"):
        self.lab += 1
        return f"{p}_{self.lab}"

    def c(self, s):
        self.lines.append("    ; " + s)

    def text(self):
        return "\n".join(self.lines) + "\n"


def stage_list():
    st = []
    for j in range(4):
        st += [("E", j, 0), ("E", j, 1), ("O", j, 0), ("E", j, 2), ("E", j, 3), ("O", j, 1)]
    return st


def gen(opt):
    a = Asm()
    STAMP = opt.stamp
    XNT = " nt" if opt.xnt else ""
    ONT = opt.ostore
    stages = stage_list()
    NS = len(stages)

    SX, SW, SO, SWS, SDBG, SG, SB = 20, 24, 28, 32, 36, 40, 44
    sT, sC, sBt, sTt, sGrp, sWave, sTmp, sTmp2 = 48, 49, 50, 51, 52, 53, 54, 55
    sXb0, sXb1, sXl0, sXl1, sWb, sWl, sOff = 56, 57, 58, 59, 60, 61, 62
    sXbE, sXbO, sXlE, sXlO = 63, 64, 65, 66
    sMaskHi, sMaskLast = 68, 70
    sPend = 72
    sSlot = 73
    sPoll = 74
    sOutB = 78
    sNv = 82
    sK = 84
    sSt = 90
    sStB = 92
    sEx = 94
    sSpin = 96
    SPIN_MAX = 200000

    def srd(d, p, nbytes):
        a(f"s_mov_b32 s{d}, s{p}")
        a(f"s_and_b32 s{d+1}, s{p+1}, 0xffff")
        a(f"s_mov_b32 s{d+2}, {nbytes}")
        a(f"s_mov_b32 s{d+3}, 0x20000")

    stamp_idx = [0]

    def stamp(idx, vt0, vt1):
        if not STAMP:
            return
        a(f"s_memrealtime s[{sSt}:{sSt+1}]")
        a("s_waitcnt lgkmcnt(0)")
        a(f"v_mov_b32 v{vt0}, s{sSt}")
        a(f"v_mov_b32 v{vt1}, s{sSt+1}")
        a(f"s_mov_b64 s[{sEx}:{sEx+1}], exec")
        a("s_mov_b64 exec, 1")
        a(f"buffer_store_dwordx2 v[{vt0}:{vt1}], off, s[{SWS}:{SWS+3}], s{sStB} offset:{idx*8}")
        a(f"s_mov_b64 exec, s[{sEx}:{sEx+1}]")

    a("s_load_dwordx8 s[4:11], s[0:1], 0")
    a("s_load_dwordx4 s[12:15], s[0:1], 32")
    a("s_load_dwordx2 s[16:17], s[0:1], 48")
    a(f"s_lshr_b32 s{sTmp}, s2, 4")
    a(f"s_lshl_b32 s{sTmp}, s{sTmp}, 3")
    a(f"s_and_b32 s{sTmp2}, s2, 7")
    a(f"s_add_u32 s{sT}, s{sTmp}, s{sTmp2}")
    a(f"s_cmp_ge_u32 s{sT}, {2*NTILE}")
    a("s_cbranch_scc1 L_end")
    a(f"s_bfe_u32 s{sC}, s2, 0x10003")
    a(f"s_cmp_ge_u32 s{sT}, {NTILE}")
    a(f"s_cselect_b32 s{sBt}, 1, 0")
    a(f"s_mul_i32 s{sTmp}, s{sBt}, {NTILE}")
    a(f"s_sub_u32 s{sTt}, s{sT}, s{sTmp}")
    a(f"s_lshl_b32 s{sGrp}, s{sBt}, 1")
    a(f"s_add_u32 s{sGrp}, s{sGrp}, s{sC}")
    a("v_lshrrev_b32 v1, 6, v0")
    a("v_and_b32 v2, 63, v0")
    a(f"v_readfirstlane_b32 s{sWave}, v1")
    a(f"s_cmp_eq_u32 s{sTt}, {NTILE-1}")
    a(f"s_cselect_b32 s{sNv}, {TR - (L_OUT - TR*(NTILE-1))}, 0")
    a(f"s_sub_u32 s{sNv}, {TR}, s{sNv}")
    a(f"s_lshl_b32 s{sStB}, s2, 8")
    a(f"s_add_u32 s{sStB}, s{sStB}, 0x100000")
    a("s_waitcnt lgkmcnt(0)")
    srd(SX, 4, X_BYTES)
    srd(SW, 6, W_BYTES)
    srd(SO, 12, OUT_BYTES)
    srd(SWS, 16, 0x200000 if STAMP else 0x40000)
    srd(SDBG, 14, 256)
    srd(SG, 8, 512)
    srd(SB, 10, 512)
    a(f"s_mul_i32 s{sTmp}, s{sBt}, {L_OUT}")
    a(f"s_mul_i32 s{sTmp2}, s{sTt}, {TR}")
    a(f"s_add_u32 s{sTmp}, s{sTmp}, s{sTmp2}")
    a(f"s_lshl_b32 s{sOutB}, s{sTmp}, 9")
    for i in range(1, 4):
        a(f"s_add_u32 s{sOutB+i}, s{sOutB}, {i*16384}")
    a(f"s_cmp_ge_u32 s{sWave}, 4")
    a("s_cbranch_scc1 L_loader")

    P = [64 + 16 * m for m in range(4)]
    Q = [128 + 16 * m for m in range(4)]
    FA = [[192 + 4 * i for i in range(8)], [8 + 4 * i for i in range(8)]]
    FB = [[224, 228], [40, 44]]
    vA = [48, 49, 50, 51]
    vA2 = [52, 53, 54, 55]
    vB = 56
    vSl = 57
    vG, vBe = 58, 59
    vT = 60
    vt = [232, 233, 234, 235, 236, 237, 238, 239]

    stamp(0, vt[0], vt[1])
    a(f"s_lshl_b32 s{sSlot}, s{sGrp}, 2")
    a(f"s_add_u32 s{sSlot}, s{sSlot}, s{sWave}")
    a(f"s_lshl_b32 s{sSlot}, s{sSlot}, 14")
    a(f"s_lshl_b32 s{sTmp}, s{sTt}, 8")
    a(f"s_add_u32 s{sTmp}, s{sTmp}, s{sSlot}")
    a(f"v_lshl_add_u32 v{vSl}, v2, 2, s{sTmp}")
    a(f"v_mov_b32 v{vt[0]}, -1")
    a(f"buffer_store_dword v{vt[0]}, v{vSl}, s[{SWS}:{SWS+3}], 0 offen sc1")
    for i in range(4):
        a(f"s_add_u32 s{sPoll+i}, s{sSlot}, {i*4096}")
    a("v_and_b32 v3, 7, v2")
    a("v_lshlrev_b32 v3, 2, v3")
    a("v_lshrrev_b32 v4, 4, v2")
    a("v_add_u32 v3, v3, v4")
    a(f"s_lshl_b32 s{sTmp}, s{sWave}, 5")
    a(f"v_add_u32 v3, s{sTmp}, v3")
    a(f"v_lshlrev_b32 v61, 2, v3")
    a(f"v_add_u32 v61, {PAR}, v61")
    a(f"s_lshl_b32 s{sTmp}, s{sC}, 7")
    a(f"v_add_lshl_u32 v3, v3, s{sTmp}, 1")
    a(f"buffer_load_ushort v{vG}, v3, s[{SG}:{SG+3}], 0 offen")
    a(f"buffer_load_ushort v{vBe}, v3, s[{SB}:{SB+3}], 0 offen")
    a("v_and_b32 v3, 31, v2")
    a("v_bfe_u32 v4, v3, 2, 1")
    a("v_lshlrev_b32 v4, 4, v4")
    a("v_and_b32 v5, 1, v3")
    a("v_lshl_add_u32 v4, v5, 3, v4")
    a("v_lshrrev_b32 v5, 3, v3")
    a("v_lshl_add_u32 v4, v5, 1, v4")
    a("v_bfe_u32 v5, v3, 1, 1")
    a("v_add_u32 v4, v4, v5")
    a("v_bfe_u32 v5, v4, 1, 3")
    a("v_lshrrev_b32 v6, 5, v2")
    a("v_xor_b32 v5, v5, v6")
    a("v_lshlrev_b32 v5, 4, v5")
    a(f"v_lshl_add_u32 v{vA[0]}, v4, 7, v5")
    for k in range(1, 4):
        a(f"v_xor_b32 v{vA[k]}, {k<<5}, v{vA[0]}")
    for k in range(4):
        a(f"v_add_u32 v{vA2[k]}, 0x10000, v{vA[k]}")
    a("v_bfe_u32 v3, v2, 2, 2")
    a("v_lshl_add_u32 v4, v6, 3, v3")
    a("v_lshlrev_b32 v4, 8, v4")
    a(f"v_xor_b32 v3, s{sWave}, v3")
    a("v_lshl_add_u32 v4, v3, 6, v4")
    a("v_bfe_u32 v3, v2, 4, 1")
    a("v_lshl_add_u32 v4, v3, 5, v4")
    a("v_and_b32 v3, 3, v2")
    a("v_lshl_add_u32 v4, v3, 3, v4")
    a(f"v_add_u32 v{vB}, {RING}, v4")
    a("v_and_b32 v3, 31, v2")
    a(f"s_lshl_b32 s{sTmp}, s{sWave}, 5")
    a(f"v_add_u32 v3, s{sTmp}, v3")
    a("v_lshrrev_b32 v4, 2, v3")
    a("v_bfe_u32 v5, v3, 6, 1")
    a("v_xor_b32 v4, v4, v5")
    a("v_lshlrev_b32 v4, 4, v4")
    a("v_and_b32 v5, 3, v3")
    a("v_lshl_add_u32 v4, v5, 2, v4")
    a(f"v_lshl_add_u32 v{vT}, v6, 13, v4")
    a(f"s_mov_b32 s{sMaskHi}, 0")
    a(f"s_mov_b32 s{sMaskHi+1}, -1")
    a(f"s_mov_b32 s{sMaskLast}, 0")
    a(f"s_cmp_eq_u32 s{sTt}, {NTILE-1}")
    a(f"s_cselect_b32 s{sMaskLast+1}, -1, 0")

    def reads_for(s):
        kind, j, q = stages[s]
        fa, fb = FA[s & 1], FB[s & 1]
        sl = [(2 * s) % 8, (2 * s + 1) % 8]
        ra, rb = [], []
        for x in range(2):
            for t in range(2):
                rb.append(f"ds_read_b64_tr_b16 v[{fb[x]+2*t}:{fb[x]+2*t+1}], v{vB} offset:{sl[x]*4096+t*1024}")
        if kind == "E":
            for m in range(4):
                ra.append(f"ds_read_b128 v[{fa[m]}:{fa[m]+3}], v{vA[q]} offset:{j*16384+m*4096}")
        else:
            for x in range(2):
                for m in range(4):
                    ra.append(f"ds_read_b128 v[{fa[4*x+m]}:{fa[4*x+m]+3}], v{vA2[2*q+x]} offset:{j*16384+m*4096}")
        if kind == "E":
            return rb[0:2] + ra[0:2] + rb[2:4] + ra[2:4]
        return rb[0:2] + ra[0:4] + rb[2:4] + ra[4:8]

    def mfmas_for(s):
        kind, j, q = stages[s]
        fa, fb = FA[s & 1], FB[s & 1]
        out = []
        first = s == 0
        if kind == "E":
            for m in range(4):
                cP = "0" if first else f"v[{P[m]}:{P[m]+15}]"
                cQ = "0" if first else f"v[{Q[m]}:{Q[m]+15}]"
                out.append(f"v_mfma_f32_32x32x16_bf16 v[{P[m]}:{P[m]+15}], v[{fa[m]}:{fa[m]+3}], v[{fb[0]}:{fb[0]+3}], {cP}")
                out.append(f"v_mfma_f32_32x32x16_bf16 v[{Q[m]}:{Q[m]+15}], v[{fa[m]}:{fa[m]+3}], v[{fb[1]}:{fb[1]+3}], {cQ}")
        else:
            for x in range(2):
                for m in range(4):
                    out.append(f"v_mfma_f32_32x32x16_bf16 v[{P[m]}:{P[m]+15}], v[{fa[4*x+m]}:{fa[4*x+m]+3}], v[{fb[x]}:{fb[x]+3}], v[{P[m]}:{P[m]+15}]")
        return out

    RESET_BAR = 3
    a.c("barrier P: stage 0 data landed")
    a("s_barrier")
    stamp(1, vt[0], vt[1])
    for r in reads_for(0):
        a(r)
    for s in range(NS):
        a.c(f"---- stage {s} {stages[s]}")
        mf = mfmas_for(s)
        rd = reads_for(s + 1) if s + 1 < NS else []
        if s == RESET_BAR:
            a("s_waitcnt vmcnt(0) lgkmcnt(0)")
        else:
            a("s_waitcnt lgkmcnt(0)")
        a(mf[0])
        a(mf[1])
        a("s_barrier")
        if s == RESET_BAR:
            lab = a.newlab("L_noat")
            a(f"s_cmp_lg_u32 s{sWave}, 0")
            a(f"s_cbranch_scc1 {lab}")
            a(f"s_lshl_b32 s{sTmp}, s{sGrp}, 6")
            a(f"v_mov_b32 v{vt[0]}, 1")
            a("s_mov_b64 exec, 1")
            a(f"buffer_atomic_add v{vt[0]}, off, s[{SDBG}:{SDBG+3}], s{sTmp} sc1")
            a("s_mov_b64 exec, -1")
            a.label(lab)
        k = 0
        per = 2
        for i in range(2, 8):
            for _ in range(per):
                if k < len(rd):
                    a(rd[k])
                    k += 1
            a(mf[i])
        assert k == len(rd)
    stamp(2, vt[0], vt[1])
    a.c("---- combine P/Q")
    cq = vt[0:4]
    for m in range(4):
        a(f"v_mov_b32 v{cq[m]}, v{Q[m]}")
    a("s_nop 1")
    for m in range(4):
        a(f"v_permlane32_swap_b32 v{Q[m]}, v{cq[m]}")
    a("s_nop 1")
    for m in range(3):
        a(f"v_cndmask_b32 v{cq[m]}, v{cq[m]}, v{Q[m+1]}, s[{sMaskHi}:{sMaskHi+1}]")
    a("s_nop 7")
    S1, S2 = 240, 244
    for m in range(4):
        for r in range(0, 14, 2):
            a(f"v_pk_add_f32 v[{P[m]+r}:{P[m]+r+1}], v[{P[m]+r}:{P[m]+r+1}], v[{Q[m]+r+2}:{Q[m]+r+3}]")
        a(f"v_add_f32 v{P[m]+14}, v{P[m]+14}, v{Q[m]+1}")
        a(f"v_add_f32 v{P[m]+15}, v{P[m]+15}, v{cq[m]}")
        if m == 3:
            a(f"v_cndmask_b32 v{P[3]+15}, v{P[3]+15}, 0, s[{sMaskHi}:{sMaskHi+1}]")
            a(f"v_cndmask_b32 v{P[3]+13}, v{P[3]+13}, 0, s[{sMaskLast}:{sMaskLast+1}]")
            a(f"v_cndmask_b32 v{P[3]+11}, v{P[3]+11}, 0, s[{sMaskLast}:{sMaskLast+1}]")
        for r in range(0, 16, 2):
            x = f"v[{P[m]+r}:{P[m]+r+1}]"
            o = 2 * ((r >> 1) & 1)
            if m == 0 and r < 4:
                a(f"v_pk_mul_f32 v[{S2+o}:{S2+o+1}], {x}, {x}")
                if r == 2:
                    pass
            else:
                a(f"v_pk_fma_f32 v[{S2+o}:{S2+o+1}], {x}, {x}, v[{S2+o}:{S2+o+1}]")
            if m == 0 and r == 0:
                continue
            if m == 0 and r == 2:
                a(f"v_pk_add_f32 v[{S1}:{S1+1}], v[{P[0]}:{P[0]+1}], {x}")
                continue
            if m == 0 and r == 4:
                continue
            if m == 0 and r == 6:
                a(f"v_pk_add_f32 v[{S1+2}:{S1+3}], v[{P[0]+4}:{P[0]+5}], {x}")
                continue
            a(f"v_pk_add_f32 v[{S1+o}:{S1+o+1}], v[{S1+o}:{S1+o+1}], {x}")
    a(f"v_pk_add_f32 v[{S1}:{S1+1}], v[{S1}:{S1+1}], v[{S1+2}:{S1+3}]")
    a(f"v_pk_add_f32 v[{S2}:{S2+1}], v[{S2}:{S2+1}], v[{S2+2}:{S2+3}]")
    a(f"v_add_f32 v{S1}, v{S1}, v{S1+1}")
    a(f"v_add_f32 v{S2}, v{S2}, v{S2+1}")
    a("s_nop 1")
    a(f"v_permlane32_swap_b32 v{S1}, v{S2}")
    a("s_nop 1")
    a(f"v_add_f32 v{S1}, v{S1}, v{S2}")
    a(f"v_cmp_eq_u32 vcc, -1, v{S1}")
    a(f"v_mov_b32 v{S2}, 0x7fc00000")
    a("s_nop 0")
    a(f"v_cndmask_b32 v{S1}, v{S1}, v{S2}, vcc")
    a(f"buffer_store_dword v{S1}, v{vSl}, s[{SWS}:{SWS+3}], 0 offen sc1")
    stamp(3, vt[0], vt[1])
    PL = [128 + 4 * m for m in range(16)]
    vPo, vPo15 = 62, 63
    a(f"v_lshlrev_b32 v{vPo}, 4, v2")
    a(f"v_cmp_gt_u32 vcc, 48, v2")
    a(f"v_mov_b32 v{vt[4]}, 0x7ff00000")
    a("s_nop 0")
    a(f"v_cndmask_b32 v{vPo15}, v{vt[4]}, v{vPo}, vcc")

    def poll_load(m):
        vo = vPo15 if m == 15 else vPo
        return f"buffer_load_dwordx4 v[{PL[m]}:{PL[m]+3}], v{vo}, s[{SWS}:{SWS+3}], s{sPoll+(m>>2)} offen offset:{(m&3)*1024} sc1"

    for m in range(16):
        a(poll_load(m))
    for m in range(4):
        for r in range(0, 16, 2):
            o0 = (32 * m + (r >> 1)) * 2
            o1 = (32 * m + 8 + (r >> 1)) * 2
            a(f"ds_write2st64_b32 v{vT}, v{P[m]+r}, v{P[m]+r+1} offset0:{o0} offset1:{o1}")
    a("s_waitcnt lgkmcnt(0)")
    a("s_barrier")
    H = [64 + 8 * i for i in range(4)]

    def tread_setup_and_issue():
        a("v_and_b32 v3, 15, v0")
        a("v_lshrrev_b32 v4, 4, v0")
        a("v_lshlrev_b32 v5, 1, v3")
        a("v_lshrrev_b32 v6, 3, v3")
        a("v_xor_b32 v5, v5, v6")
        a("v_lshlrev_b32 v5, 4, v5")
        a("v_lshl_add_u32 v5, v4, 9, v5")
        a("v_xor_b32 v6, 16, v5")
        for i in range(4):
            a(f"ds_read_b128 v[{H[i]}:{H[i]+3}], v5 offset:{i*16384}")
            a(f"ds_read_b128 v[{H[i]+4}:{H[i]+7}], v6 offset:{i*16384}")
        a(f"s_lshl_b32 s{sTmp}, s{sC}, 8")
        a(f"v_lshl_add_u32 v8, v4, 9, s{sTmp}")
        a("v_lshl_add_u32 v8, v3, 4, v8")
        a("v_add_u32 v4, 96, v4")
        a(f"v_cmp_gt_u32 vcc, s{sNv}, v4")
        a("v_mov_b32 v9, 0x7ff00000")
        a("v_lshlrev_b32 v10, 5, v3")
        a("v_cndmask_b32 v9, v9, v8, vcc")
        a(f"v_add_u32 v10, {PAR}, v10")

    tread_setup_and_issue()
    a(f"s_mov_b32 s{sPend}, 0xffff")
    a(f"s_mov_b32 s{sSpin}, 0")
    a("s_branch L_check")
    a.label("L_poll")
    a(f"s_add_u32 s{sSpin}, s{sSpin}, 1")
    a(f"s_cmp_gt_u32 s{sSpin}, {SPIN_MAX}")
    a("s_cbranch_scc1 L_pdone")
    for m in range(16):
        lab = a.newlab("L_pl")
        a(f"s_bitcmp1_b32 s{sPend}, {m}")
        a(f"s_cbranch_scc0 {lab}")
        a(poll_load(m))
        a.label(lab)
    a.label("L_check")
    a("s_waitcnt vmcnt(0)")
    for m in range(16):
        lab = a.newlab("L_pc")
        a(f"s_bitcmp1_b32 s{sPend}, {m}")
        a(f"s_cbranch_scc0 {lab}")
        a(f"v_max3_u32 v{vt[0]}, v{PL[m]}, v{PL[m]+1}, v{PL[m]+2}")
        a(f"v_max_u32 v{vt[0]}, v{vt[0]}, v{PL[m]+3}")
        a(f"v_cmp_eq_u32 vcc, -1, v{vt[0]}")
        a("s_cmp_eq_u64 vcc, 0")
        a(f"s_cbranch_scc0 {lab}")
        a(f"s_bitset0_b32 s{sPend}, {m}")
        a.label(lab)
    a(f"s_cmp_lg_u32 s{sPend}, 0")
    a("s_cbranch_scc1 L_poll")
    a.label("L_pdone")
    stamp(4, vt[0], vt[1])
    step = 1
    while step < 16:
        for m in range(0, 16, 2 * step):
            for hh in range(2):
                d, s_ = PL[m] + 2 * hh, PL[m + step] + 2 * hh
                a(f"v_pk_add_f32 v[{d}:{d+1}], v[{d}:{d+1}], v[{s_}:{s_+1}]")
        step *= 2
    v0_, v1_, v2_, v3_ = PL[0], PL[0] + 1, PL[0] + 2, PL[0] + 3
    a("s_nop 1")
    a(f"v_permlane16_swap_b32 v{v0_}, v{v1_}")
    a(f"v_permlane16_swap_b32 v{v2_}, v{v3_}")
    a("s_nop 1")
    a(f"v_add_f32 v{v0_}, v{v0_}, v{v1_}")
    a(f"v_add_f32 v{v2_}, v{v2_}, v{v3_}")
    a("s_nop 1")
    a(f"v_permlane32_swap_b32 v{v0_}, v{v2_}")
    a("s_nop 1")
    a(f"v_add_f32 v{v0_}, v{v0_}, v{v2_}")
    a("s_nop 1")
    a(f"v_mov_b32_dpp v{v1_}, v{v0_} row_ror:8 row_mask:0xf bank_mask:0xf")
    c1 = -2.0 * math.sqrt(2.0 / math.pi) * math.log2(math.e)
    c2 = c1 * 0.044715
    sc = -((-c2) ** (1.0 / 3.0))
    a(f"v_mul_f32 v{v0_}, {hex(f2u(1.0/L_OUT))}, v{v0_}")
    a(f"v_mul_f32 v{v1_}, {hex(f2u(1.0/L_OUT))}, v{v1_}")
    a(f"v_fma_f32 v{v1_}, -v{v0_}, v{v0_}, v{v1_}")
    a(f"v_max_f32 v{v1_}, 0, v{v1_}")
    a(f"v_add_f32 v{v1_}, {hex(f2u(1e-5))}, v{v1_}")
    a(f"v_rsq_f32 v{v1_}, v{v1_}")
    a(f"v_lshlrev_b32 v{vG}, 16, v{vG}")
    a(f"v_lshlrev_b32 v{vBe}, 16, v{vBe}")
    a(f"v_mul_f32 v{vG}, {hex(f2u(sc))}, v{vG}")
    a(f"v_mul_f32 v{vBe}, {hex(f2u(sc))}, v{vBe}")
    a(f"v_mul_f32 v{v1_}, v{v1_}, v{vG}")
    a(f"v_fma_f32 v{v0_}, -v{v0_}, v{v1_}, v{vBe}")
    a(f"s_mov_b32 s{sTmp}, 0x00ff00ff")
    a(f"s_mov_b32 exec_lo, s{sTmp}")
    a(f"s_mov_b32 exec_hi, s{sTmp}")
    a(f"ds_write2_b32 v61, v{v1_}, v{v0_} offset0:0 offset1:128")
    a("s_mov_b64 exec, -1")
    a("s_waitcnt lgkmcnt(0)")
    a("s_barrier")
    a("s_branch L_epi")

    a.label("L_loader")
    a(f"s_sub_u32 s{sWave}, s{sWave}, 4")
    a("v_lshrrev_b32 v3, 3, v2")
    a("v_lshlrev_b32 v3, 10, v3")
    a(f"s_and_b32 s{sTmp}, s{sWave}, 1")
    a(f"s_lshl_b32 s{sTmp}, s{sTmp}, 2")
    a("v_lshrrev_b32 v4, 4, v2")
    a(f"v_add_u32 v4, s{sTmp}, v4")
    a("v_and_b32 v5, 7, v2")
    a("v_xor_b32 v4, v4, v5")
    a("v_lshl_add_u32 v3, v4, 4, v3")
    a("v_lshrrev_b32 v5, 4, v2")
    a("v_bfe_u32 v6, v2, 2, 2")
    a("v_xor_b32 v6, v6, v5")
    a("v_lshlrev_b32 v4, 9, v5")
    a("v_lshl_add_u32 v4, v6, 6, v4")
    a("v_and_b32 v6, 3, v2")
    a("v_lshl_add_u32 v4, v6, 4, v4")
    a(f"s_bfe_u32 s{sTmp}, s2, 0x50003")
    a(f"s_lshl_b32 s{sTmp}, s{sTmp}, 2")
    a(f"s_add_u32 s{sTmp}, s{sTmp}, s{sWave}")
    a(f"s_mul_i32 s{sTmp}, s{sTmp}, 3072")
    a("v_min_u32 v5, 47, v2")
    a(f"v_lshl_add_u32 v5, v5, 6, s{sTmp}")
    a(f"s_mul_i32 s{sXbE}, s{sBt}, {XB_BATCH}")
    a(f"s_mul_i32 s{sTmp}, s{sTt}, {TR*1024}")
    a(f"s_add_u32 s{sXbE}, s{sXbE}, s{sTmp}")
    a(f"s_lshl_b32 s{sTmp}, s{sWave}, 13")
    a(f"s_add_u32 s{sXbE}, s{sXbE}, s{sTmp}")
    a(f"s_add_u32 s{sXbO}, s{sXbE}, 512")
    a(f"s_lshl_b32 s{sXlE}, s{sWave}, 10")
    a(f"s_add_u32 s{sXlO}, s{sXlE}, 65536")
    a(f"s_cmp_eq_u32 s{sC}, 0")
    a(f"s_cselect_b32 s{sXb0}, s{sXbE}, s{sXbO}")
    a(f"s_cselect_b32 s{sXb1}, s{sXbO}, s{sXbE}")
    a(f"s_cselect_b32 s{sXl0}, s{sXlE}, s{sXlO}")
    a(f"s_cselect_b32 s{sXl1}, s{sXlO}, s{sXlE}")
    a(f"s_lshl_b32 s{sWb}, s{sWave}, 11")
    a(f"s_lshl_b32 s{sTmp}, s{sC}, 8")
    a(f"s_add_u32 s{sWb}, s{sWb}, s{sTmp}")
    a(f"s_lshl_b32 s{sWl}, s{sWave}, 10")
    a(f"s_add_u32 s{sWl}, s{sWl}, {RING}")

    issued = []

    def dma_x(which, j, qq, tag):
        sb, sl = {"E": (sXbE, sXlE), "O": (sXbO, sXlO), 0: (sXb0, sXl0), 1: (sXb1, sXl1)}[which]
        a(f"s_add_u32 m0, s{sl}, {j*16384+qq*4096}")
        a(f"s_add_u32 s{sOff}, s{sb}, {qq*32768+j*128}")
        a(f"buffer_load_dwordx4 v3, s[{SX}:{SX+3}], s{sOff} offen{XNT} lds")
        issued.append(tag)

    def dma_w(s):
        kind, j, q = stages[s]
        rows = [0 * 256 + 64 * j + 16 * q, 2 * 256 + 64 * j + 16 * q] if kind == "E" else \
            [256 + 64 * j + 32 * q, 256 + 64 * j + 32 * q + 16]
        for x in range(2):
            sl = (2 * s + x) % 8
            a(f"s_add_u32 m0, s{sWl}, {sl*4096}")
            a(f"s_add_u32 s{sOff}, s{sWb}, {rows[x]*512}")
            a(f"buffer_load_dwordx4 v4, s[{SW}:{SW+3}], s{sOff} offen lds")
            issued.append(("W", s))

    def need_tags(s):
        kind, j, q = stages[s]
        t = {("W", s)}
        if j == 0:
            t.add(("X", kind, 0))
        else:
            t.add(("X", "any", j))
        return t

    def bar(s_needed):
        if s_needed is not None:
            need = need_tags(s_needed)
            last = max(i for i, t in enumerate(issued) if t in need)
            for t in need:
                assert t in issued, t
            n = len(issued) - 1 - last
            a(f"s_waitcnt vmcnt({min(n,63)})")
        a("s_barrier")

    if opt.wpf:
        a(f"buffer_load_dword v6, v5, s[{SW}:{SW+3}], 0 offen")
        issued.append(("PF",))
    for qq in range(4):
        dma_x("E", 0, qq, ("X", "E", 0))
    dma_w(0)
    dma_w(1)
    for qq in range(4):
        dma_x("O", 0, qq, ("X", "O", 0))
    dma_w(2)
    dma_w(3)
    xsched = {}
    for j in range(1, 4):
        items = [(0, j, qq) for qq in range(4)] + [(1, j, qq) for qq in range(4)]
        base = 6 * (j - 1) - 1
        cnts = opt.xcnt
        k = 0
        for d, n in enumerate(cnts):
            for _ in range(n):
                xsched.setdefault(base + d, []).append(items[k])
                k += 1
        assert k == 8
    for it in xsched.get(-1, []):
        dma_x(it[0], it[1], it[2], ("X", "any", it[1]))
    bar(0)
    vCnt = 7
    for s in range(NS):
        if s == NS - 2:
            a(f"s_mov_b32 s{sSpin}, 0")
            a.label("L_cnt")
            a("s_waitcnt vmcnt(0)")
            a(f"s_add_u32 s{sSpin}, s{sSpin}, 1")
            a(f"s_cmp_gt_u32 s{sSpin}, {SPIN_MAX}")
            a("s_cbranch_scc1 L_cnt_ok")
            a(f"v_readfirstlane_b32 s{sTmp}, v{vCnt}")
            a(f"s_cmp_ge_u32 s{sTmp}, {NTILE}")
            a("s_cbranch_scc1 L_cnt_ok")
            a(f"buffer_load_dword v{vCnt}, off, s[{SDBG}:{SDBG+3}], s{sTmp2} sc1")
            a("s_branch L_cnt")
            a.label("L_cnt_ok")
            a("s_barrier")
        else:
            bar(s + 1 if s + 1 < NS else None)
        if s + 4 < NS:
            dma_w(s + 4)
        for it in xsched.get(s, []):
            dma_x(it[0], it[1], it[2], ("X", "any", it[1]))
        if s + 4 == NS - 1:
            a(f"s_lshl_b32 s{sTmp2}, s{sGrp}, 6")
            a(f"buffer_load_dword v{vCnt}, off, s[{SDBG}:{SDBG+3}], s{sTmp2} sc1")
            issued.append(("CNT",))
    a("s_barrier")
    tread_setup_and_issue()
    a("s_barrier")

    a.label("L_epi")
    SCL, SHF = 16, 24
    a(f"ds_read_b128 v[{SCL}:{SCL+3}], v10")
    a(f"ds_read_b128 v[{SCL+4}:{SCL+7}], v10 offset:16")
    a(f"ds_read_b128 v[{SHF}:{SHF+3}], v10 offset:512")
    a(f"ds_read_b128 v[{SHF+4}:{SHF+7}], v10 offset:528")
    k1 = c1 / sc
    a(f"s_mov_b32 s{sK}, {hex(f2u(k1))}")
    a(f"s_mov_b32 s{sK+1}, {hex(f2u(k1))}")
    a(f"s_mov_b32 s{sK+2}, {hex(f2u(sc))}")
    a(f"s_mov_b32 s{sK+3}, {hex(f2u(sc))}")
    a("s_waitcnt lgkmcnt(0)")
    W_, O_ = 32, 48
    for i in range(4):
        h = H[i]
        w_ = W_ + 8 * (i & 1)
        o_ = O_ + 4 * (i & 1)
        for p in range(4):
            a(f"v_pk_fma_f32 v[{h+2*p}:{h+2*p+1}], v[{h+2*p}:{h+2*p+1}], v[{SCL+2*p}:{SCL+2*p+1}], v[{SHF+2*p}:{SHF+2*p+1}]")
        for p in range(4):
            a(f"v_pk_fma_f32 v[{w_+2*p}:{w_+2*p+1}], v[{h+2*p}:{h+2*p+1}], v[{h+2*p}:{h+2*p+1}], s[{sK}:{sK+1}]")
        for p in range(4):
            a(f"v_pk_mul_f32 v[{w_+2*p}:{w_+2*p+1}], v[{w_+2*p}:{w_+2*p+1}], v[{h+2*p}:{h+2*p+1}]")
        for e in range(8):
            a(f"v_exp_f32 v{w_+e}, v{w_+e}")
        for p in range(4):
            a(f"v_pk_fma_f32 v[{w_+2*p}:{w_+2*p+1}], v[{w_+2*p}:{w_+2*p+1}], s[{sK+2}:{sK+3}], s[{sK+2}:{sK+3}]")
        for e in range(8):
            a(f"v_rcp_f32 v{w_+e}, v{w_+e}")
        for p in range(4):
            a(f"v_pk_mul_f32 v[{w_+2*p}:{w_+2*p+1}], v[{w_+2*p}:{w_+2*p+1}], v[{h+2*p}:{h+2*p+1}]")
        for p in range(4):
            a(f"v_cvt_pk_bf16_f32 v{o_+p}, v{w_+2*p}, v{w_+2*p+1}")
        vo = 9 if i == 3 else 8
        a(f"buffer_store_dwordx4 v[{o_}:{o_+3}], v{vo}, s[{SO}:{SO+3}], s{sOutB+i} offen{ONT}")
    if STAMP:
        a(f"s_cmp_lg_u32 s{sWave}, 0")
        a("s_cbranch_scc1 L_end")
        a("v_cmp_gt_u32 vcc, 64, v0")
        a("s_cbranch_vccz L_end")
        stamp(5, 232, 233)
        a("s_waitcnt vmcnt(0)")
        stamp(6, 232, 233)
    a.label("L_end")
    a("s_endpgm")

    hdr = open("cdna_kernels/%s.s.ref" % NAME).read().split("\n")
    head = []
    for ln in hdr:
        if ln.startswith("; @launch"):
            head.append("; @launch grid=(254,1,1) block=(512,1,1) lds=163840")
            break
        head.append(ln)
    out = "\n".join(head) + "\n"
    out += f""".amdgcn_target "amdgcn-amd-amdhsa--gfx950"
.text
.globl {NAME}_kernel
.p2align 8
.type {NAME}_kernel,@function
{NAME}_kernel:
"""
    out += a.text()
    out += f""".section .rodata,"a"
.p2align 6
.amdhsa_kernel {NAME}_kernel
  .amdhsa_next_free_vgpr 256
  .amdhsa_next_free_sgpr 102
  .amdhsa_accum_offset 256
  .amdhsa_group_segment_fixed_size 0
  .amdhsa_kernarg_size 56
  .amdhsa_user_sgpr_count 2
  .amdhsa_user_sgpr_kernarg_segment_ptr 1
  .amdhsa_system_sgpr_workgroup_id_x 1
.end_amdhsa_kernel
"""
    return out


if __name__ == "__main__":
    ap = argparse.ArgumentParser()
    ap.add_argument("-o", default="cdna_kernels/%s.s" % NAME)
    ap.add_argument("--stamp", type=int, default=0)
    ap.add_argument("--xnt", type=int, default=1)
    ap.add_argument("--wpf", type=int, default=1)
    ap.add_argument("--ostore", default="")
    ap.add_argument("--xcnt", default="2,2,2,2,0,0")
    o = ap.parse_args()
    o.xcnt = [int(v) for v in o.xcnt.split(",")]
    if o.ostore:
        o.ostore = " " + o.ostore.replace("+", " ")
    open(o.o, "w").write(gen(o))
```

```python
import sys, math, struct, argparse

NAME = "standalone__self_sup_conv_stem_wavlm__speech"
L_OUT = 7999
TR = 127
NTILE = 63
XB_BATCH = 16000 * 512
X_BYTES = 2 * XB_BATCH
W_BYTES = 3 * 256 * 256 * 2
OUT_BYTES = 2 * L_OUT * 512
RING = 131072
PAR = 65536


def f2u(f):
    return struct.unpack("<I", struct.pack("<f", f))[0]


class Asm:
    def __init__(self):
        self.lines = []
        self.lab = 0

    def __call__(self, s):
        self.lines.append("    " + s)

    def label(self, n):
        self.lines.append(n + ":")

    def newlab(self, p="L"):
        self.lab += 1
        return f"{p}_{self.lab}"

    def c(self, s):
        self.lines.append("    ; " + s)

    def text(self):
        return "\n".join(self.lines) + "\n"


def stage_list():
    st = []
    for j in range(4):
        st += [("E", j, 0), ("E", j, 1), ("O", j, 0), ("E", j, 2), ("E", j, 3), ("O", j, 1)]
    return st


def gen(opt):
    a = Asm()
    STAMP = opt.stamp
    XNT = " nt" if opt.xnt else ""
    ONT = opt.ostore
    stages = stage_list()
    NS = len(stages)

    SX, SW, SO, SWS, SDBG, SG, SB = 20, 24, 28, 32, 36, 40, 44
    sT, sC, sBt, sTt, sGrp, sWave, sTmp, sTmp2 = 48, 49, 50, 51, 52, 53, 54, 55
    sXb0, sXb1, sXl0, sXl1, sWb, sWl, sOff = 56, 57, 58, 59, 60, 61, 62
    sXbE, sXbO, sXlE, sXlO = 63, 64, 65, 66
    sMaskHi, sMaskLast = 68, 70
    sPend = 72
    sSlot = 73
    sPoll = 74
    sOutB = 78
    sNv = 82
    sK = 84
    sSt = 90
    sStB = 92
    sEx = 94
    sSpin = 96
    SPIN_MAX = 200000

    def srd(d, p, nbytes):
        a(f"s_mov_b32 s{d}, s{p}")
        a(f"s_and_b32 s{d+1}, s{p+1}, 0xffff")
        a(f"s_mov_b32 s{d+2}, {nbytes}")
        a(f"s_mov_b32 s{d+3}, 0x20000")

    stamp_idx = [0]

    def stamp(idx, vt0, vt1):
        if not STAMP:
            return
        a(f"s_memrealtime s[{sSt}:{sSt+1}]")
        a("s_waitcnt lgkmcnt(0)")
        a(f"v_mov_b32 v{vt0}, s{sSt}")
        a(f"v_mov_b32 v{vt1}, s{sSt+1}")
        a(f"s_mov_b64 s[{sEx}:{sEx+1}], exec")
        a("s_mov_b64 exec, 1")
        a(f"buffer_store_dwordx2 v[{vt0}:{vt1}], off, s[{SWS}:{SWS+3}], s{sStB} offset:{idx*8}")
        a(f"s_mov_b64 exec, s[{sEx}:{sEx+1}]")

    if opt.dbgstamp:
        a("s_memrealtime s[98:99]")
        a("s_memtime s[100:101]")
    a("s_load_dwordx8 s[4:11], s[0:1], 0")
    a("s_load_dwordx4 s[12:15], s[0:1], 32")
    a("s_load_dwordx2 s[16:17], s[0:1], 48")
    a(f"s_lshr_b32 s{sTmp}, s2, 4")
    a(f"s_lshl_b32 s{sTmp}, s{sTmp}, 3")
    a(f"s_and_b32 s{sTmp2}, s2, 7")
    a(f"s_add_u32 s{sT}, s{sTmp}, s{sTmp2}")
    a(f"s_cmp_ge_u32 s{sT}, {2*NTILE}")
    a("s_cbranch_scc1 L_end")
    a(f"s_bfe_u32 s{sC}, s2, 0x10003")
    a(f"s_cmp_ge_u32 s{sT}, {NTILE}")
    a(f"s_cselect_b32 s{sBt}, 1, 0")
    a(f"s_mul_i32 s{sTmp}, s{sBt}, {NTILE}")
    a(f"s_sub_u32 s{sTt}, s{sT}, s{sTmp}")
    a(f"s_lshl_b32 s{sGrp}, s{sBt}, 1")
    a(f"s_add_u32 s{sGrp}, s{sGrp}, s{sC}")
    a("v_lshrrev_b32 v1, 6, v0")
    a("v_and_b32 v2, 63, v0")
    a(f"v_readfirstlane_b32 s{sWave}, v1")
    a(f"s_cmp_eq_u32 s{sTt}, {NTILE-1}")
    a(f"s_cselect_b32 s{sNv}, {TR - (L_OUT - TR*(NTILE-1))}, 0")
    a(f"s_sub_u32 s{sNv}, {TR}, s{sNv}")
    a(f"s_lshl_b32 s{sStB}, s2, 8")
    a(f"s_add_u32 s{sStB}, s{sStB}, 0x100000")
    a("s_waitcnt lgkmcnt(0)")
    srd(SX, 4, X_BYTES)
    srd(SW, 6, W_BYTES)
    srd(SO, 12, OUT_BYTES)
    srd(SWS, 16, 0x200000 if STAMP else 0x40000)
    srd(SDBG, 14, 256)
    srd(SG, 8, 512)
    srd(SB, 10, 512)
    a(f"s_mul_i32 s{sTmp}, s{sBt}, {L_OUT}")
    a(f"s_mul_i32 s{sTmp2}, s{sTt}, {TR}")
    a(f"s_add_u32 s{sTmp}, s{sTmp}, s{sTmp2}")
    a(f"s_lshl_b32 s{sOutB}, s{sTmp}, 9")
    for i in range(1, 4):
        a(f"s_add_u32 s{sOutB+i}, s{sOutB}, {i*16384}")
    a(f"s_cmp_ge_u32 s{sWave}, 4")
    a("s_cbranch_scc1 L_loader")

    P = [64 + 16 * m for m in range(4)]
    Q = [128 + 16 * m for m in range(4)]
    FA = [[192 + 4 * i for i in range(8)], [8 + 4 * i for i in range(8)]]
    FB = [[224, 228], [40, 44]]
    vA = [48, 49, 50, 51]
    vA2 = [52, 53, 54, 55]
    vB = 56
    vSl = 57
    vG, vBe = 58, 59
    vT = 60
    vt = [232, 233, 234, 235, 236, 237, 238, 239]

    stamp(0, vt[0], vt[1])
    a(f"s_lshl_b32 s{sSlot}, s{sGrp}, 2")
    a(f"s_add_u32 s{sSlot}, s{sSlot}, s{sWave}")
    a(f"s_lshl_b32 s{sSlot}, s{sSlot}, 14")
    a(f"s_lshl_b32 s{sTmp}, s{sTt}, 8")
    a(f"s_add_u32 s{sTmp}, s{sTmp}, s{sSlot}")
    a(f"v_lshl_add_u32 v{vSl}, v2, 2, s{sTmp}")
    a(f"v_mov_b32 v{vt[0]}, -1")
    a(f"buffer_store_dword v{vt[0]}, v{vSl}, s[{SWS}:{SWS+3}], 0 offen sc1")
    for i in range(4):
        a(f"s_add_u32 s{sPoll+i}, s{sSlot}, {i*4096}")
    a("v_and_b32 v3, 7, v2")
    a("v_lshlrev_b32 v3, 2, v3")
    a("v_lshrrev_b32 v4, 4, v2")
    a("v_add_u32 v3, v3, v4")
    a(f"s_lshl_b32 s{sTmp}, s{sWave}, 5")
    a(f"v_add_u32 v3, s{sTmp}, v3")
    a(f"v_lshlrev_b32 v61, 2, v3")
    a(f"v_add_u32 v61, {PAR}, v61")
    a(f"s_lshl_b32 s{sTmp}, s{sC}, 7")
    a(f"v_add_lshl_u32 v3, v3, s{sTmp}, 1")
    a(f"buffer_load_ushort v{vG}, v3, s[{SG}:{SG+3}], 0 offen")
    a(f"buffer_load_ushort v{vBe}, v3, s[{SB}:{SB+3}], 0 offen")
    a("v_and_b32 v3, 31, v2")
    a("v_bfe_u32 v4, v3, 2, 1")
    a("v_lshlrev_b32 v4, 4, v4")
    a("v_and_b32 v5, 1, v3")
    a("v_lshl_add_u32 v4, v5, 3, v4")
    a("v_lshrrev_b32 v5, 3, v3")
    a("v_lshl_add_u32 v4, v5, 1, v4")
    a("v_bfe_u32 v5, v3, 1, 1")
    a("v_add_u32 v4, v4, v5")
    a("v_bfe_u32 v5, v4, 1, 3")
    a("v_lshrrev_b32 v6, 5, v2")
    a("v_xor_b32 v5, v5, v6")
    a("v_lshlrev_b32 v5, 4, v5")
    a(f"v_lshl_add_u32 v{vA[0]}, v4, 7, v5")
    for k in range(1, 4):
        a(f"v_xor_b32 v{vA[k]}, {k<<5}, v{vA[0]}")
    for k in range(4):
        a(f"v_add_u32 v{vA2[k]}, 0x10000, v{vA[k]}")
    a("v_bfe_u32 v3, v2, 2, 2")
    a("v_lshl_add_u32 v4, v6, 3, v3")
    a("v_lshlrev_b32 v4, 8, v4")
    a(f"v_xor_b32 v3, s{sWave}, v3")
    a("v_lshl_add_u32 v4, v3, 6, v4")
    a("v_bfe_u32 v3, v2, 4, 1")
    a("v_lshl_add_u32 v4, v3, 5, v4")
    a("v_and_b32 v3, 3, v2")
    a("v_lshl_add_u32 v4, v3, 3, v4")
    a(f"v_add_u32 v{vB}, {RING}, v4")
    a("v_and_b32 v3, 31, v2")
    a(f"s_lshl_b32 s{sTmp}, s{sWave}, 5")
    a(f"v_add_u32 v3, s{sTmp}, v3")
    a("v_lshrrev_b32 v4, 2, v3")
    a("v_bfe_u32 v5, v3, 6, 1")
    a("v_xor_b32 v4, v4, v5")
    a("v_lshlrev_b32 v4, 4, v4")
    a("v_and_b32 v5, 3, v3")
    a("v_lshl_add_u32 v4, v5, 2, v4")
    a(f"v_lshl_add_u32 v{vT}, v6, 13, v4")
    a(f"s_mov_b32 s{sMaskHi}, 0")
    a(f"s_mov_b32 s{sMaskHi+1}, -1")
    a(f"s_mov_b32 s{sMaskLast}, 0")
    a(f"s_cmp_eq_u32 s{sTt}, {NTILE-1}")
    a(f"s_cselect_b32 s{sMaskLast+1}, -1, 0")

    def reads_for(s):
        kind, j, q = stages[s]
        fa, fb = FA[s & 1], FB[s & 1]
        sl = [(2 * s) % 8, (2 * s + 1) % 8]
        ra, rb = [], []
        for x in range(2):
            for t in range(2):
                rb.append(f"ds_read_b64_tr_b16 v[{fb[x]+2*t}:{fb[x]+2*t+1}], v{vB} offset:{sl[x]*4096+t*1024}")
        if kind == "E":
            for m in range(4):
                ra.append(f"ds_read_b128 v[{fa[m]}:{fa[m]+3}], v{vA[q]} offset:{j*16384+m*4096}")
        else:
            for x in range(2):
                for m in range(4):
                    ra.append(f"ds_read_b128 v[{fa[4*x+m]}:{fa[4*x+m]+3}], v{vA2[2*q+x]} offset:{j*16384+m*4096}")
        if kind == "E":
            return rb[0:2] + ra[0:2] + rb[2:4] + ra[2:4]
        return rb[0:2] + ra[0:4] + rb[2:4] + ra[4:8]

    def mfmas_for(s):
        kind, j, q = stages[s]
        fa, fb = FA[s & 1], FB[s & 1]
        out = []
        first = s == 0
        if kind == "E":
            for m in range(4):
                cP = "0" if first else f"v[{P[m]}:{P[m]+15}]"
                cQ = "0" if first else f"v[{Q[m]}:{Q[m]+15}]"
                out.append(f"v_mfma_f32_32x32x16_bf16 v[{P[m]}:{P[m]+15}], v[{fa[m]}:{fa[m]+3}], v[{fb[0]}:{fb[0]+3}], {cP}")
                out.append(f"v_mfma_f32_32x32x16_bf16 v[{Q[m]}:{Q[m]+15}], v[{fa[m]}:{fa[m]+3}], v[{fb[1]}:{fb[1]+3}], {cQ}")
        else:
            for x in range(2):
                for m in range(4):
                    out.append(f"v_mfma_f32_32x32x16_bf16 v[{P[m]}:{P[m]+15}], v[{fa[4*x+m]}:{fa[4*x+m]+3}], v[{fb[x]}:{fb[x]+3}], v[{P[m]}:{P[m]+15}]")
        return out

    RESET_BAR = 3
    a.c("barrier P: stage 0 data landed")
    a("s_barrier")
    stamp(1, vt[0], vt[1])
    if opt.dbgstamp:
        a("s_memrealtime s[90:91]")
        a("s_waitcnt lgkmcnt(0)")
        a("s_mov_b32 s83, s90")
    for r in reads_for(0):
        a(r)
    for s in range(NS):
        a.c(f"---- stage {s} {stages[s]}")
        mf = mfmas_for(s)
        rd = reads_for(s + 1) if s + 1 < NS else []
        if s == RESET_BAR:
            a("s_waitcnt vmcnt(0) lgkmcnt(0)")
        else:
            a("s_waitcnt lgkmcnt(0)")
        a(mf[0])
        a(mf[1])
        a("s_barrier")
        if s == RESET_BAR:
            lab = a.newlab("L_noat")
            a(f"s_cmp_lg_u32 s{sWave}, 0")
            a(f"s_cbranch_scc1 {lab}")
            a(f"s_lshl_b32 s{sTmp}, s{sGrp}, 6")
            a(f"v_mov_b32 v{vt[0]}, 1")
            a("s_mov_b64 exec, 1")
            a(f"buffer_atomic_add v{vt[0]}, off, s[{SDBG}:{SDBG+3}], s{sTmp} sc1")
            a("s_mov_b64 exec, -1")
            a.label(lab)
        k = 0
        per = 2
        for i in range(2, 8):
            for _ in range(per):
                if k < len(rd):
                    a(rd[k])
                    k += 1
            a(mf[i])
        assert k == len(rd)
    stamp(2, vt[0], vt[1])
    if opt.dbgstamp:
        a("s_memrealtime s[90:91]")
        a("s_waitcnt lgkmcnt(0)")
        a("s_mov_b32 s97, s90")
    a.c("---- combine P/Q")
    cq = vt[0:4]
    for m in range(4):
        a(f"v_mov_b32 v{cq[m]}, v{Q[m]}")
    a("s_nop 1")
    for m in range(4):
        a(f"v_permlane32_swap_b32 v{Q[m]}, v{cq[m]}")
    a("s_nop 1")
    for m in range(3):
        a(f"v_cndmask_b32 v{cq[m]}, v{cq[m]}, v{Q[m+1]}, s[{sMaskHi}:{sMaskHi+1}]")
    a("s_nop 7")
    S1, S2 = 240, 244
    for m in range(4):
        for r in range(0, 14, 2):
            a(f"v_pk_add_f32 v[{P[m]+r}:{P[m]+r+1}], v[{P[m]+r}:{P[m]+r+1}], v[{Q[m]+r+2}:{Q[m]+r+3}]")
        a(f"v_add_f32 v{P[m]+14}, v{P[m]+14}, v{Q[m]+1}")
        a(f"v_add_f32 v{P[m]+15}, v{P[m]+15}, v{cq[m]}")
        if m == 3:
            a(f"v_cndmask_b32 v{P[3]+15}, v{P[3]+15}, 0, s[{sMaskHi}:{sMaskHi+1}]")
            a(f"v_cndmask_b32 v{P[3]+13}, v{P[3]+13}, 0, s[{sMaskLast}:{sMaskLast+1}]")
            a(f"v_cndmask_b32 v{P[3]+11}, v{P[3]+11}, 0, s[{sMaskLast}:{sMaskLast+1}]")
        for r in range(0, 16, 2):
            x = f"v[{P[m]+r}:{P[m]+r+1}]"
            o = 2 * ((r >> 1) & 1)
            if m == 0 and r < 4:
                a(f"v_pk_mul_f32 v[{S2+o}:{S2+o+1}], {x}, {x}")
                if r == 2:
                    pass
            else:
                a(f"v_pk_fma_f32 v[{S2+o}:{S2+o+1}], {x}, {x}, v[{S2+o}:{S2+o+1}]")
            if m == 0 and r == 0:
                continue
            if m == 0 and r == 2:
                a(f"v_pk_add_f32 v[{S1}:{S1+1}], v[{P[0]}:{P[0]+1}], {x}")
                continue
            if m == 0 and r == 4:
                continue
            if m == 0 and r == 6:
                a(f"v_pk_add_f32 v[{S1+2}:{S1+3}], v[{P[0]+4}:{P[0]+5}], {x}")
                continue
            a(f"v_pk_add_f32 v[{S1+o}:{S1+o+1}], v[{S1+o}:{S1+o+1}], {x}")
    a(f"v_pk_add_f32 v[{S1}:{S1+1}], v[{S1}:{S1+1}], v[{S1+2}:{S1+3}]")
    a(f"v_pk_add_f32 v[{S2}:{S2+1}], v[{S2}:{S2+1}], v[{S2+2}:{S2+3}]")
    a(f"v_add_f32 v{S1}, v{S1}, v{S1+1}")
    a(f"v_add_f32 v{S2}, v{S2}, v{S2+1}")
    a("s_nop 1")
    a(f"v_permlane32_swap_b32 v{S1}, v{S2}")
    a("s_nop 1")
    a(f"v_add_f32 v{S1}, v{S1}, v{S2}")
    a(f"v_cmp_eq_u32 vcc, -1, v{S1}")
    a(f"v_mov_b32 v{S2}, 0x7fc00000")
    a("s_nop 0")
    a(f"v_cndmask_b32 v{S1}, v{S1}, v{S2}, vcc")
    a(f"buffer_store_dword v{S1}, v{vSl}, s[{SWS}:{SWS+3}], 0 offen sc1")
    stamp(3, vt[0], vt[1])
    PL = [128 + 4 * m for m in range(16)]
    vPo, vPo15 = 62, 63
    a(f"v_lshlrev_b32 v{vPo}, 4, v2")
    a(f"v_cmp_gt_u32 vcc, 48, v2")
    a(f"v_mov_b32 v{vt[4]}, 0x7ff00000")
    a("s_nop 0")
    a(f"v_cndmask_b32 v{vPo15}, v{vt[4]}, v{vPo}, vcc")

    def poll_load(m):
        vo = vPo15 if m == 15 else vPo
        return f"buffer_load_dwordx4 v[{PL[m]}:{PL[m]+3}], v{vo}, s[{SWS}:{SWS+3}], s{sPoll+(m>>2)} offen offset:{(m&3)*1024} sc1"

    for m in range(16):
        a(poll_load(m))
    for m in range(4):
        for r in range(0, 16, 2):
            o0 = (32 * m + (r >> 1)) * 2
            o1 = (32 * m + 8 + (r >> 1)) * 2
            a(f"ds_write2st64_b32 v{vT}, v{P[m]+r}, v{P[m]+r+1} offset0:{o0} offset1:{o1}")
    a("s_waitcnt lgkmcnt(0)")
    a("s_barrier")
    H = [64 + 8 * i for i in range(4)]

    def tread_setup_and_issue():
        a("v_and_b32 v3, 15, v0")
        a("v_lshrrev_b32 v4, 4, v0")
        a("v_lshlrev_b32 v5, 1, v3")
        a("v_lshrrev_b32 v6, 3, v3")
        a("v_xor_b32 v5, v5, v6")
        a("v_lshlrev_b32 v5, 4, v5")
        a("v_lshl_add_u32 v5, v4, 9, v5")
        a("v_xor_b32 v6, 16, v5")
        for i in range(4):
            a(f"ds_read_b128 v[{H[i]}:{H[i]+3}], v5 offset:{i*16384}")
            a(f"ds_read_b128 v[{H[i]+4}:{H[i]+7}], v6 offset:{i*16384}")
        a(f"s_lshl_b32 s{sTmp}, s{sC}, 8")
        a(f"v_lshl_add_u32 v8, v4, 9, s{sTmp}")
        a("v_lshl_add_u32 v8, v3, 4, v8")
        a("v_add_u32 v4, 96, v4")
        a(f"v_cmp_gt_u32 vcc, s{sNv}, v4")
        a("v_mov_b32 v9, 0x7ff00000")
        a("v_lshlrev_b32 v10, 5, v3")
        a("v_cndmask_b32 v9, v9, v8, vcc")
        a(f"v_add_u32 v10, {PAR}, v10")

    tread_setup_and_issue()
    a(f"s_mov_b32 s{sPend}, 0xffff")
    a(f"s_mov_b32 s{sSpin}, 0")
    a("s_branch L_check")
    a.label("L_poll")
    a(f"s_add_u32 s{sSpin}, s{sSpin}, 1")
    a(f"s_cmp_gt_u32 s{sSpin}, {SPIN_MAX}")
    a("s_cbranch_scc1 L_pdone")
    for m in range(16):
        lab = a.newlab("L_pl")
        a(f"s_bitcmp1_b32 s{sPend}, {m}")
        a(f"s_cbranch_scc0 {lab}")
        a(poll_load(m))
        a.label(lab)
    a.label("L_check")
    a("s_waitcnt vmcnt(0)")
    for m in range(16):
        lab = a.newlab("L_pc")
        a(f"s_bitcmp1_b32 s{sPend}, {m}")
        a(f"s_cbranch_scc0 {lab}")
        a(f"v_max3_u32 v{vt[0]}, v{PL[m]}, v{PL[m]+1}, v{PL[m]+2}")
        a(f"v_max_u32 v{vt[0]}, v{vt[0]}, v{PL[m]+3}")
        a(f"v_cmp_eq_u32 vcc, -1, v{vt[0]}")
        a("s_cmp_eq_u64 vcc, 0")
        a(f"s_cbranch_scc0 {lab}")
        a(f"s_bitset0_b32 s{sPend}, {m}")
        a.label(lab)
    a(f"s_cmp_lg_u32 s{sPend}, 0")
    a("s_cbranch_scc1 L_poll")
    a.label("L_pdone")
    stamp(4, vt[0], vt[1])
    step = 1
    while step < 16:
        for m in range(0, 16, 2 * step):
            for hh in range(2):
                d, s_ = PL[m] + 2 * hh, PL[m + step] + 2 * hh
                a(f"v_pk_add_f32 v[{d}:{d+1}], v[{d}:{d+1}], v[{s_}:{s_+1}]")
        step *= 2
    v0_, v1_, v2_, v3_ = PL[0], PL[0] + 1, PL[0] + 2, PL[0] + 3
    a("s_nop 1")
    a(f"v_permlane16_swap_b32 v{v0_}, v{v1_}")
    a(f"v_permlane16_swap_b32 v{v2_}, v{v3_}")
    a("s_nop 1")
    a(f"v_add_f32 v{v0_}, v{v0_}, v{v1_}")
    a(f"v_add_f32 v{v2_}, v{v2_}, v{v3_}")
    a("s_nop 1")
    a(f"v_permlane32_swap_b32 v{v0_}, v{v2_}")
    a("s_nop 1")
    a(f"v_add_f32 v{v0_}, v{v0_}, v{v2_}")
    a("s_nop 1")
    a(f"v_mov_b32_dpp v{v1_}, v{v0_} row_ror:8 row_mask:0xf bank_mask:0xf")
    c1 = -2.0 * math.sqrt(2.0 / math.pi) * math.log2(math.e)
    c2 = c1 * 0.044715
    sc = -((-c2) ** (1.0 / 3.0))
    a(f"v_mul_f32 v{v0_}, {hex(f2u(1.0/L_OUT))}, v{v0_}")
    a(f"v_mul_f32 v{v1_}, {hex(f2u(1.0/L_OUT))}, v{v1_}")
    a(f"v_fma_f32 v{v1_}, -v{v0_}, v{v0_}, v{v1_}")
    a(f"v_max_f32 v{v1_}, 0, v{v1_}")
    a(f"v_add_f32 v{v1_}, {hex(f2u(1e-5))}, v{v1_}")
    a(f"v_rsq_f32 v{v1_}, v{v1_}")
    a(f"v_lshlrev_b32 v{vG}, 16, v{vG}")
    a(f"v_lshlrev_b32 v{vBe}, 16, v{vBe}")
    a(f"v_mul_f32 v{vG}, {hex(f2u(sc))}, v{vG}")
    a(f"v_mul_f32 v{vBe}, {hex(f2u(sc))}, v{vBe}")
    a(f"v_mul_f32 v{v1_}, v{v1_}, v{vG}")
    a(f"v_fma_f32 v{v0_}, -v{v0_}, v{v1_}, v{vBe}")
    a(f"s_mov_b32 s{sTmp}, 0x00ff00ff")
    a(f"s_mov_b32 exec_lo, s{sTmp}")
    a(f"s_mov_b32 exec_hi, s{sTmp}")
    a(f"ds_write2_b32 v61, v{v1_}, v{v0_} offset0:0 offset1:128")
    a("s_mov_b64 exec, -1")
    a("s_waitcnt lgkmcnt(0)")
    a("s_barrier")
    a("s_branch L_epi")

    a.label("L_loader")
    a(f"s_sub_u32 s{sWave}, s{sWave}, 4")
    a("v_lshrrev_b32 v3, 3, v2")
    a("v_lshlrev_b32 v3, 10, v3")
    a(f"s_and_b32 s{sTmp}, s{sWave}, 1")
    a(f"s_lshl_b32 s{sTmp}, s{sTmp}, 2")
    a("v_lshrrev_b32 v4, 4, v2")
    a(f"v_add_u32 v4, s{sTmp}, v4")
    a("v_and_b32 v5, 7, v2")
    a("v_xor_b32 v4, v4, v5")
    a("v_lshl_add_u32 v3, v4, 4, v3")
    a("v_lshrrev_b32 v5, 4, v2")
    a("v_bfe_u32 v6, v2, 2, 2")
    a("v_xor_b32 v6, v6, v5")
    a("v_lshlrev_b32 v4, 9, v5")
    a("v_lshl_add_u32 v4, v6, 6, v4")
    a("v_and_b32 v6, 3, v2")
    a("v_lshl_add_u32 v4, v6, 4, v4")
    a(f"s_bfe_u32 s{sTmp}, s2, 0x50003")
    a(f"s_lshl_b32 s{sTmp}, s{sTmp}, 2")
    a(f"s_add_u32 s{sTmp}, s{sTmp}, s{sWave}")
    a(f"s_mul_i32 s{sTmp}, s{sTmp}, 3072")
    a("v_min_u32 v5, 47, v2")
    a(f"v_lshl_add_u32 v5, v5, 6, s{sTmp}")
    a(f"s_mul_i32 s{sXbE}, s{sBt}, {XB_BATCH}")
    a(f"s_mul_i32 s{sTmp}, s{sTt}, {TR*1024}")
    a(f"s_add_u32 s{sXbE}, s{sXbE}, s{sTmp}")
    a(f"s_lshl_b32 s{sTmp}, s{sWave}, 13")
    a(f"s_add_u32 s{sXbE}, s{sXbE}, s{sTmp}")
    a(f"s_add_u32 s{sXbO}, s{sXbE}, 512")
    a(f"s_lshl_b32 s{sXlE}, s{sWave}, 10")
    a(f"s_add_u32 s{sXlO}, s{sXlE}, 65536")
    a(f"s_cmp_eq_u32 s{sC}, 0")
    a(f"s_cselect_b32 s{sXb0}, s{sXbE}, s{sXbO}")
    a(f"s_cselect_b32 s{sXb1}, s{sXbO}, s{sXbE}")
    a(f"s_cselect_b32 s{sXl0}, s{sXlE}, s{sXlO}")
    a(f"s_cselect_b32 s{sXl1}, s{sXlO}, s{sXlE}")
    a(f"s_lshl_b32 s{sWb}, s{sWave}, 11")
    a(f"s_lshl_b32 s{sTmp}, s{sC}, 8")
    a(f"s_add_u32 s{sWb}, s{sWb}, s{sTmp}")
    a(f"s_lshl_b32 s{sWl}, s{sWave}, 10")
    a(f"s_add_u32 s{sWl}, s{sWl}, {RING}")

    issued = []

    def dma_x(which, j, qq, tag):
        sb, sl = {"E": (sXbE, sXlE), "O": (sXbO, sXlO), 0: (sXb0, sXl0), 1: (sXb1, sXl1)}[which]
        a(f"s_add_u32 m0, s{sl}, {j*16384+qq*4096}")
        a(f"s_add_u32 s{sOff}, s{sb}, {qq*32768+j*128}")
        a(f"buffer_load_dwordx4 v3, s[{SX}:{SX+3}], s{sOff} offen{XNT} lds")
        issued.append(tag)

    def dma_w(s):
        kind, j, q = stages[s]
        rows = [0 * 256 + 64 * j + 16 * q, 2 * 256 + 64 * j + 16 * q] if kind == "E" else \
            [256 + 64 * j + 32 * q, 256 + 64 * j + 32 * q + 16]
        for x in range(2):
            sl = (2 * s + x) % 8
            a(f"s_add_u32 m0, s{sWl}, {sl*4096}")
            a(f"s_add_u32 s{sOff}, s{sWb}, {rows[x]*512}")
            a(f"buffer_load_dwordx4 v4, s[{SW}:{SW+3}], s{sOff} offen lds")
            issued.append(("W", s))

    def need_tags(s):
        kind, j, q = stages[s]
        t = {("W", s)}
        if j == 0:
            t.add(("X", kind, 0))
        else:
            t.add(("X", "any", j))
        return t

    def bar(s_needed):
        if s_needed is not None:
            need = need_tags(s_needed)
            last = max(i for i, t in enumerate(issued) if t in need)
            for t in need:
                assert t in issued, t
            n = len(issued) - 1 - last
            a(f"s_waitcnt vmcnt({min(n,63)})")
        a("s_barrier")

    if opt.wpf:
        a(f"buffer_load_dword v6, v5, s[{SW}:{SW+3}], 0 offen")
        issued.append(("PF",))
    for qq in range(4):
        dma_x("E", 0, qq, ("X", "E", 0))
    dma_w(0)
    dma_w(1)
    for qq in range(4):
        dma_x("O", 0, qq, ("X", "O", 0))
    dma_w(2)
    dma_w(3)
    xsched = {}
    for j in range(1, 4):
        items = [(0, j, qq) for qq in range(4)] + [(1, j, qq) for qq in range(4)]
        base = 6 * (j - 1) - 1
        cnts = opt.xcnt
        k = 0
        for d, n in enumerate(cnts):
            for _ in range(n):
                xsched.setdefault(base + d, []).append(items[k])
                k += 1
        assert k == 8
    for it in xsched.get(-1, []):
        dma_x(it[0], it[1], it[2], ("X", "any", it[1]))
    bar(0)
    vCnt = 7
    for s in range(NS):
        if s == NS - 2:
            a(f"s_mov_b32 s{sSpin}, 0")
            a.label("L_cnt")
            a("s_waitcnt vmcnt(0)")
            a(f"s_add_u32 s{sSpin}, s{sSpin}, 1")
            a(f"s_cmp_gt_u32 s{sSpin}, {SPIN_MAX}")
            a("s_cbranch_scc1 L_cnt_ok")
            a(f"v_readfirstlane_b32 s{sTmp}, v{vCnt}")
            a(f"s_cmp_ge_u32 s{sTmp}, {NTILE}")
            a("s_cbranch_scc1 L_cnt_ok")
            a(f"buffer_load_dword v{vCnt}, off, s[{SDBG}:{SDBG+3}], s{sTmp2} sc1")
            a("s_branch L_cnt")
            a.label("L_cnt_ok")
            a("s_barrier")
        else:
            bar(s + 1 if s + 1 < NS else None)
        if s + 4 < NS:
            dma_w(s + 4)
        for it in xsched.get(s, []):
            dma_x(it[0], it[1], it[2], ("X", "any", it[1]))
        if s + 4 == NS - 1:
            a(f"s_lshl_b32 s{sTmp2}, s{sGrp}, 6")
            a(f"buffer_load_dword v{vCnt}, off, s[{SDBG}:{SDBG+3}], s{sTmp2} sc1")
            issued.append(("CNT",))
    a("s_barrier")
    tread_setup_and_issue()
    a("s_barrier")

    a.label("L_epi")
    SCL, SHF = 16, 24
    a(f"ds_read_b128 v[{SCL}:{SCL+3}], v10")
    a(f"ds_read_b128 v[{SCL+4}:{SCL+7}], v10 offset:16")
    a(f"ds_read_b128 v[{SHF}:{SHF+3}], v10 offset:512")
    a(f"ds_read_b128 v[{SHF+4}:{SHF+7}], v10 offset:528")
    k1 = c1 / sc
    a(f"s_mov_b32 s{sK}, {hex(f2u(k1))}")
    a(f"s_mov_b32 s{sK+1}, {hex(f2u(k1))}")
    a(f"s_mov_b32 s{sK+2}, {hex(f2u(sc))}")
    a(f"s_mov_b32 s{sK+3}, {hex(f2u(sc))}")
    a("s_waitcnt lgkmcnt(0)")
    W_, O_ = 32, 48
    for i in range(4):
        h = H[i]
        w_ = W_ + 8 * (i & 1)
        o_ = O_ + 4 * (i & 1)
        for p in range(4):
            a(f"v_pk_fma_f32 v[{h+2*p}:{h+2*p+1}], v[{h+2*p}:{h+2*p+1}], v[{SCL+2*p}:{SCL+2*p+1}], v[{SHF+2*p}:{SHF+2*p+1}]")
        for p in range(4):
            a(f"v_pk_fma_f32 v[{w_+2*p}:{w_+2*p+1}], v[{h+2*p}:{h+2*p+1}], v[{h+2*p}:{h+2*p+1}], s[{sK}:{sK+1}]")
        for p in range(4):
            a(f"v_pk_mul_f32 v[{w_+2*p}:{w_+2*p+1}], v[{w_+2*p}:{w_+2*p+1}], v[{h+2*p}:{h+2*p+1}]")
        for e in range(8):
            a(f"v_exp_f32 v{w_+e}, v{w_+e}")
        for p in range(4):
            a(f"v_pk_fma_f32 v[{w_+2*p}:{w_+2*p+1}], v[{w_+2*p}:{w_+2*p+1}], s[{sK+2}:{sK+3}], s[{sK+2}:{sK+3}]")
        for e in range(8):
            a(f"v_rcp_f32 v{w_+e}, v{w_+e}")
        for p in range(4):
            a(f"v_pk_mul_f32 v[{w_+2*p}:{w_+2*p+1}], v[{w_+2*p}:{w_+2*p+1}], v[{h+2*p}:{h+2*p+1}]")
        for p in range(4):
            a(f"v_cvt_pk_bf16_f32 v{o_+p}, v{w_+2*p}, v{w_+2*p+1}")
        vo = 9 if i == 3 else 8
        a(f"buffer_store_dwordx4 v[{o_}:{o_+3}], v{vo}, s[{SO}:{SO+3}], s{sOutB+i} offen{ONT}")
    if STAMP:
        a(f"s_cmp_lg_u32 s{sWave}, 0")
        a("s_cbranch_scc1 L_end")
        a("v_cmp_gt_u32 vcc, 64, v0")
        a("s_cbranch_vccz L_end")
        stamp(5, 232, 233)
        a("s_waitcnt vmcnt(0)")
        stamp(6, 232, 233)
    if opt.dbgstamp:
        a("v_cmp_gt_u32 vcc, 64, v0")
        a("s_cbranch_vccz L_end")
        a("s_waitcnt vmcnt(0)")
        a("s_memrealtime s[90:91]")
        a("s_memtime s[92:93]")
        a("s_waitcnt lgkmcnt(0)")
        a("s_mov_b64 exec, 1")
        a("v_mov_b32 v1, s90")
        a(f"buffer_atomic_umax v1, off, s[{SDBG}:{SDBG+3}], 0 offset:4 sc1")
        a("s_not_b32 s94, s98")
        a("v_mov_b32 v2, s94")
        a(f"buffer_atomic_umax v2, off, s[{SDBG}:{SDBG+3}], 0 offset:8 sc1")
        a("s_sub_u32 s94, s90, s98")
        a("v_mov_b32 v3, s94")
        a(f"buffer_atomic_umax v3, off, s[{SDBG}:{SDBG+3}], 0 offset:12 sc1")
        a("s_sub_u32 s94, s92, s100")
        a("v_mov_b32 v4, s94")
        a(f"buffer_atomic_umax v4, off, s[{SDBG}:{SDBG+3}], 0 offset:16 sc1")
        a("v_mov_b32 v5, s97")
        a(f"buffer_atomic_umax v5, off, s[{SDBG}:{SDBG+3}], 0 offset:20 sc1")
        a("v_mov_b32 v6, s83")
        a(f"buffer_atomic_umax v6, off, s[{SDBG}:{SDBG+3}], 0 offset:24 sc1")
    a.label("L_end")
    a("s_endpgm")

    hdr = open("cdna_kernels/%s.s.ref" % NAME).read().split("\n")
    head = []
    for ln in hdr:
        if ln.startswith("; @launch"):
            head.append("; @launch grid=(254,1,1) block=(512,1,1) lds=163840")
            break
        head.append(ln)
    out = "\n".join(head) + "\n"
    out += f""".amdgcn_target "amdgcn-amd-amdhsa--gfx950"
.text
.globl {NAME}_kernel
.p2align 8
.type {NAME}_kernel,@function
{NAME}_kernel:
"""
    out += a.text()
    out += f""".section .rodata,"a"
.p2align 6
.amdhsa_kernel {NAME}_kernel
  .amdhsa_next_free_vgpr 256
  .amdhsa_next_free_sgpr 102
  .amdhsa_accum_offset 256
  .amdhsa_group_segment_fixed_size 0
  .amdhsa_kernarg_size 56
  .amdhsa_user_sgpr_count 2
  .amdhsa_user_sgpr_kernarg_segment_ptr 1
  .amdhsa_system_sgpr_workgroup_id_x 1
.end_amdhsa_kernel
"""
    return out


if __name__ == "__main__":
    ap = argparse.ArgumentParser()
    ap.add_argument("-o", default="cdna_kernels/%s.s" % NAME)
    ap.add_argument("--stamp", type=int, default=0)
    ap.add_argument("--dbgstamp", type=int, default=0)
    ap.add_argument("--xnt", type=int, default=1)
    ap.add_argument("--wpf", type=int, default=1)
    ap.add_argument("--ostore", default="")
    ap.add_argument("--xcnt", default="2,2,2,2,0,0")
    o = ap.parse_args()
    o.xcnt = [int(v) for v in o.xcnt.split(",")]
    if o.ostore:
        o.ostore = " " + o.ostore.replace("+", " ")
    open(o.o, "w").write(gen(o))
```

```python
import sys, math, struct, argparse

NAME = "standalone__self_sup_conv_stem_wavlm__speech"
L_OUT = 7999
TR = 127
NTILE = 63
XB_BATCH = 16000 * 512
X_BYTES = 2 * XB_BATCH
W_BYTES = 3 * 256 * 256 * 2
OUT_BYTES = 2 * L_OUT * 512
RING = 131072
PAR = 65536


def f2u(f):
    return struct.unpack("<I", struct.pack("<f", f))[0]


class Asm:
    def __init__(self):
        self.lines = []
        self.lab = 0

    def __call__(self, s):
        self.lines.append("    " + s)

    def label(self, n):
        self.lines.append(n + ":")

    def newlab(self, p="L"):
        self.lab += 1
        return f"{p}_{self.lab}"

    def c(self, s):
        self.lines.append("    ; " + s)

    def text(self):
        return "\n".join(self.lines) + "\n"


def stage_list():
    st = []
    for j in range(4):
        st += [("E", j, 0), ("E", j, 1), ("O", j, 0), ("E", j, 2), ("E", j, 3), ("O", j, 1)]
    return st


def gen(opt):
    a = Asm()
    STAMP = opt.stamp
    XNT = " nt" if opt.xnt else ""
    ONT = opt.ostore
    stages = stage_list()
    NS = len(stages)

    SX, SW, SO, SWS, SDBG, SG, SB = 20, 24, 28, 32, 36, 40, 44
    sT, sC, sBt, sTt, sGrp, sWave, sTmp, sTmp2 = 48, 49, 50, 51, 52, 53, 54, 55
    sXb0, sXb1, sXl0, sXl1, sWb, sWl, sOff = 56, 57, 58, 59, 60, 61, 62
    sXbE, sXbO, sXlE, sXlO = 63, 64, 65, 66
    sMaskHi, sMaskLast = 68, 70
    sPend = 72
    sSlot = 73
    sPoll = 74
    sOutB = 78
    sNv = 82
    sK = 84
    sSt = 90
    sStB = 92
    sEx = 94
    sSpin = 96
    SPIN_MAX = 200000

    def srd(d, p, nbytes):
        a(f"s_mov_b32 s{d}, s{p}")
        a(f"s_and_b32 s{d+1}, s{p+1}, 0xffff")
        a(f"s_mov_b32 s{d+2}, {nbytes}")
        a(f"s_mov_b32 s{d+3}, 0x20000")

    stamp_idx = [0]

    def stamp(idx, vt0, vt1):
        if not STAMP:
            return
        a(f"s_memrealtime s[{sSt}:{sSt+1}]")
        a("s_waitcnt lgkmcnt(0)")
        a(f"v_mov_b32 v{vt0}, s{sSt}")
        a(f"v_mov_b32 v{vt1}, s{sSt+1}")
        a(f"s_mov_b64 s[{sEx}:{sEx+1}], exec")
        a("s_mov_b64 exec, 1")
        a(f"buffer_store_dwordx2 v[{vt0}:{vt1}], off, s[{SWS}:{SWS+3}], s{sStB} offset:{idx*8}")
        a(f"s_mov_b64 exec, s[{sEx}:{sEx+1}]")

    if opt.dbl:
        a("s_memrealtime s[98:99]")
    if opt.dbgstamp:
        a("s_memrealtime s[98:99]")
        a("s_memtime s[100:101]")
    a("s_load_dwordx8 s[4:11], s[0:1], 0")
    a("s_load_dwordx4 s[12:15], s[0:1], 32")
    a("s_load_dwordx2 s[16:17], s[0:1], 48")
    a(f"s_lshr_b32 s{sTmp}, s2, 4")
    a(f"s_lshl_b32 s{sTmp}, s{sTmp}, 3")
    a(f"s_and_b32 s{sTmp2}, s2, 7")
    a(f"s_add_u32 s{sT}, s{sTmp}, s{sTmp2}")
    a(f"s_cmp_ge_u32 s{sT}, {2*NTILE}")
    a("s_cbranch_scc1 L_end")
    a(f"s_bfe_u32 s{sC}, s2, 0x10003")
    a(f"s_cmp_ge_u32 s{sT}, {NTILE}")
    a(f"s_cselect_b32 s{sBt}, 1, 0")
    a(f"s_mul_i32 s{sTmp}, s{sBt}, {NTILE}")
    a(f"s_sub_u32 s{sTt}, s{sT}, s{sTmp}")
    a(f"s_lshl_b32 s{sGrp}, s{sBt}, 1")
    a(f"s_add_u32 s{sGrp}, s{sGrp}, s{sC}")
    a("v_lshrrev_b32 v1, 6, v0")
    a("v_and_b32 v2, 63, v0")
    a(f"v_readfirstlane_b32 s{sWave}, v1")
    a(f"s_cmp_eq_u32 s{sTt}, {NTILE-1}")
    a(f"s_cselect_b32 s{sNv}, {TR - (L_OUT - TR*(NTILE-1))}, 0")
    a(f"s_sub_u32 s{sNv}, {TR}, s{sNv}")
    a(f"s_lshl_b32 s{sStB}, s2, 8")
    a(f"s_add_u32 s{sStB}, s{sStB}, 0x100000")
    a("s_waitcnt lgkmcnt(0)")
    srd(SX, 4, X_BYTES)
    srd(SW, 6, W_BYTES)
    srd(SO, 12, OUT_BYTES)
    srd(SWS, 16, 0x200000 if STAMP else 0x40000)
    srd(SDBG, 14, 256)
    srd(SG, 8, 512)
    srd(SB, 10, 512)
    a(f"s_mul_i32 s{sTmp}, s{sBt}, {L_OUT}")
    a(f"s_mul_i32 s{sTmp2}, s{sTt}, {TR}")
    a(f"s_add_u32 s{sTmp}, s{sTmp}, s{sTmp2}")
    a(f"s_lshl_b32 s{sOutB}, s{sTmp}, 9")
    for i in range(1, 4):
        a(f"s_add_u32 s{sOutB+i}, s{sOutB}, {i*16384}")
    a(f"s_cmp_ge_u32 s{sWave}, 4")
    a("s_cbranch_scc1 L_loader")

    P = [64 + 16 * m for m in range(4)]
    Q = [128 + 16 * m for m in range(4)]
    FA = [[192 + 4 * i for i in range(8)], [8 + 4 * i for i in range(8)]]
    FB = [[224, 228], [40, 44]]
    vA = [48, 49, 50, 51]
    vA2 = [52, 53, 54, 55]
    vB = 56
    vSl = 57
    vG, vBe = 58, 59
    vT = 60
    vt = [232, 233, 234, 235, 236, 237, 238, 239]

    stamp(0, vt[0], vt[1])
    a(f"s_lshl_b32 s{sSlot}, s{sGrp}, 2")
    a(f"s_add_u32 s{sSlot}, s{sSlot}, s{sWave}")
    a(f"s_lshl_b32 s{sSlot}, s{sSlot}, 14")
    a(f"s_lshl_b32 s{sTmp}, s{sTt}, 8")
    a(f"s_add_u32 s{sTmp}, s{sTmp}, s{sSlot}")
    a(f"v_lshl_add_u32 v{vSl}, v2, 2, s{sTmp}")
    a(f"v_mov_b32 v{vt[0]}, -1")
    a(f"buffer_store_dword v{vt[0]}, v{vSl}, s[{SWS}:{SWS+3}], 0 offen sc1")
    for i in range(4):
        a(f"s_add_u32 s{sPoll+i}, s{sSlot}, {i*4096}")
    a("v_and_b32 v3, 7, v2")
    a("v_lshlrev_b32 v3, 2, v3")
    a("v_lshrrev_b32 v4, 4, v2")
    a("v_add_u32 v3, v3, v4")
    a(f"s_lshl_b32 s{sTmp}, s{sWave}, 5")
    a(f"v_add_u32 v3, s{sTmp}, v3")
    a(f"v_lshlrev_b32 v61, 2, v3")
    a(f"v_add_u32 v61, {PAR}, v61")
    a(f"s_lshl_b32 s{sTmp}, s{sC}, 7")
    a(f"v_add_lshl_u32 v3, v3, s{sTmp}, 1")
    a(f"buffer_load_ushort v{vG}, v3, s[{SG}:{SG+3}], 0 offen")
    a(f"buffer_load_ushort v{vBe}, v3, s[{SB}:{SB+3}], 0 offen")
    a("v_and_b32 v3, 31, v2")
    a("v_bfe_u32 v4, v3, 2, 1")
    a("v_lshlrev_b32 v4, 4, v4")
    a("v_and_b32 v5, 1, v3")
    a("v_lshl_add_u32 v4, v5, 3, v4")
    a("v_lshrrev_b32 v5, 3, v3")
    a("v_lshl_add_u32 v4, v5, 1, v4")
    a("v_bfe_u32 v5, v3, 1, 1")
    a("v_add_u32 v4, v4, v5")
    a("v_bfe_u32 v5, v4, 1, 3")
    a("v_lshrrev_b32 v6, 5, v2")
    a("v_xor_b32 v5, v5, v6")
    a("v_lshlrev_b32 v5, 4, v5")
    a(f"v_lshl_add_u32 v{vA[0]}, v4, 7, v5")
    for k in range(1, 4):
        a(f"v_xor_b32 v{vA[k]}, {k<<5}, v{vA[0]}")
    for k in range(4):
        a(f"v_add_u32 v{vA2[k]}, 0x10000, v{vA[k]}")
    a("v_bfe_u32 v3, v2, 2, 2")
    a("v_lshl_add_u32 v4, v6, 3, v3")
    a("v_lshlrev_b32 v4, 8, v4")
    a(f"v_xor_b32 v3, s{sWave}, v3")
    a("v_lshl_add_u32 v4, v3, 6, v4")
    a("v_bfe_u32 v3, v2, 4, 1")
    a("v_lshl_add_u32 v4, v3, 5, v4")
    a("v_and_b32 v3, 3, v2")
    a("v_lshl_add_u32 v4, v3, 3, v4")
    a(f"v_add_u32 v{vB}, {RING}, v4")
    a("v_and_b32 v3, 31, v2")
    a(f"s_lshl_b32 s{sTmp}, s{sWave}, 5")
    a(f"v_add_u32 v3, s{sTmp}, v3")
    a("v_lshrrev_b32 v4, 2, v3")
    a("v_bfe_u32 v5, v3, 6, 1")
    a("v_xor_b32 v4, v4, v5")
    a("v_lshlrev_b32 v4, 4, v4")
    a("v_and_b32 v5, 3, v3")
    a("v_lshl_add_u32 v4, v5, 2, v4")
    a(f"v_lshl_add_u32 v{vT}, v6, 13, v4")
    a(f"s_mov_b32 s{sMaskHi}, 0")
    a(f"s_mov_b32 s{sMaskHi+1}, -1")
    a(f"s_mov_b32 s{sMaskLast}, 0")
    a(f"s_cmp_eq_u32 s{sTt}, {NTILE-1}")
    a(f"s_cselect_b32 s{sMaskLast+1}, -1, 0")

    def reads_for(s):
        kind, j, q = stages[s]
        fa, fb = FA[s & 1], FB[s & 1]
        sl = [(2 * s) % 8, (2 * s + 1) % 8]
        ra, rb = [], []
        for x in range(2):
            for t in range(2):
                rb.append(f"ds_read_b64_tr_b16 v[{fb[x]+2*t}:{fb[x]+2*t+1}], v{vB} offset:{sl[x]*4096+t*1024}")
        if kind == "E":
            for m in range(4):
                ra.append(f"ds_read_b128 v[{fa[m]}:{fa[m]+3}], v{vA[q]} offset:{j*16384+m*4096}")
        else:
            for x in range(2):
                for m in range(4):
                    ra.append(f"ds_read_b128 v[{fa[4*x+m]}:{fa[4*x+m]+3}], v{vA2[2*q+x]} offset:{j*16384+m*4096}")
        if kind == "E":
            return rb[0:2] + ra[0:2] + rb[2:4] + ra[2:4]
        return rb[0:2] + ra[0:4] + rb[2:4] + ra[4:8]

    def mfmas_for(s):
        kind, j, q = stages[s]
        fa, fb = FA[s & 1], FB[s & 1]
        out = []
        first = s == 0
        if kind == "E":
            for m in range(4):
                cP = "0" if first else f"v[{P[m]}:{P[m]+15}]"
                cQ = "0" if first else f"v[{Q[m]}:{Q[m]+15}]"
                out.append(f"v_mfma_f32_32x32x16_bf16 v[{P[m]}:{P[m]+15}], v[{fa[m]}:{fa[m]+3}], v[{fb[0]}:{fb[0]+3}], {cP}")
                out.append(f"v_mfma_f32_32x32x16_bf16 v[{Q[m]}:{Q[m]+15}], v[{fa[m]}:{fa[m]+3}], v[{fb[1]}:{fb[1]+3}], {cQ}")
        else:
            for x in range(2):
                for m in range(4):
                    out.append(f"v_mfma_f32_32x32x16_bf16 v[{P[m]}:{P[m]+15}], v[{fa[4*x+m]}:{fa[4*x+m]+3}], v[{fb[x]}:{fb[x]+3}], v[{P[m]}:{P[m]+15}]")
        return out

    RESET_BAR = 3
    a.c("barrier P: stage 0 data landed")
    a("s_barrier")
    stamp(1, vt[0], vt[1])
    if opt.dbgstamp:
        a("s_memrealtime s[90:91]")
        a("s_waitcnt lgkmcnt(0)")
        a("s_mov_b32 s83, s90")
    for r in reads_for(0):
        a(r)
    for s in range(NS):
        a.c(f"---- stage {s} {stages[s]}")
        mf = mfmas_for(s)
        rd = reads_for(s + 1) if s + 1 < NS else []
        if s == RESET_BAR:
            a("s_waitcnt vmcnt(0) lgkmcnt(0)")
        else:
            a("s_waitcnt lgkmcnt(0)")
        a(mf[0])
        a(mf[1])
        a("s_barrier")
        if s == RESET_BAR:
            lab = a.newlab("L_noat")
            a(f"s_cmp_lg_u32 s{sWave}, 0")
            a(f"s_cbranch_scc1 {lab}")
            a(f"s_lshl_b32 s{sTmp}, s{sGrp}, 6")
            a(f"v_mov_b32 v{vt[0]}, 1")
            a("s_mov_b64 exec, 1")
            a(f"buffer_atomic_add v{vt[0]}, off, s[{SDBG}:{SDBG+3}], s{sTmp} sc1")
            a("s_mov_b64 exec, -1")
            a.label(lab)
        k = 0
        per = 2
        for i in range(2, 8):
            for _ in range(per):
                if k < len(rd):
                    a(rd[k])
                    k += 1
            a(mf[i])
        assert k == len(rd)
    stamp(2, vt[0], vt[1])
    if opt.dbgstamp:
        a("s_memrealtime s[90:91]")
        a("s_waitcnt lgkmcnt(0)")
        a("s_mov_b32 s97, s90")
    a.c("---- combine P/Q")
    cq = vt[0:4]
    for m in range(4):
        a(f"v_mov_b32 v{cq[m]}, v{Q[m]}")
    a("s_nop 1")
    for m in range(4):
        a(f"v_permlane32_swap_b32 v{Q[m]}, v{cq[m]}")
    a("s_nop 1")
    for m in range(3):
        a(f"v_cndmask_b32 v{cq[m]}, v{cq[m]}, v{Q[m+1]}, s[{sMaskHi}:{sMaskHi+1}]")
    a("s_nop 7")
    S1, S2 = 240, 244
    for m in range(4):
        for r in range(0, 14, 2):
            a(f"v_pk_add_f32 v[{P[m]+r}:{P[m]+r+1}], v[{P[m]+r}:{P[m]+r+1}], v[{Q[m]+r+2}:{Q[m]+r+3}]")
        a(f"v_add_f32 v{P[m]+14}, v{P[m]+14}, v{Q[m]+1}")
        a(f"v_add_f32 v{P[m]+15}, v{P[m]+15}, v{cq[m]}")
        if m == 3:
            a(f"v_cndmask_b32 v{P[3]+15}, v{P[3]+15}, 0, s[{sMaskHi}:{sMaskHi+1}]")
            a(f"v_cndmask_b32 v{P[3]+13}, v{P[3]+13}, 0, s[{sMaskLast}:{sMaskLast+1}]")
            a(f"v_cndmask_b32 v{P[3]+11}, v{P[3]+11}, 0, s[{sMaskLast}:{sMaskLast+1}]")
        for r in range(0, 16, 2):
            x = f"v[{P[m]+r}:{P[m]+r+1}]"
            o = 2 * ((r >> 1) & 1)
            if m == 0 and r < 4:
                a(f"v_pk_mul_f32 v[{S2+o}:{S2+o+1}], {x}, {x}")
                if r == 2:
                    pass
            else:
                a(f"v_pk_fma_f32 v[{S2+o}:{S2+o+1}], {x}, {x}, v[{S2+o}:{S2+o+1}]")
            if m == 0 and r == 0:
                continue
            if m == 0 and r == 2:
                a(f"v_pk_add_f32 v[{S1}:{S1+1}], v[{P[0]}:{P[0]+1}], {x}")
                continue
            if m == 0 and r == 4:
                continue
            if m == 0 and r == 6:
                a(f"v_pk_add_f32 v[{S1+2}:{S1+3}], v[{P[0]+4}:{P[0]+5}], {x}")
                continue
            a(f"v_pk_add_f32 v[{S1+o}:{S1+o+1}], v[{S1+o}:{S1+o+1}], {x}")
    a(f"v_pk_add_f32 v[{S1}:{S1+1}], v[{S1}:{S1+1}], v[{S1+2}:{S1+3}]")
    a(f"v_pk_add_f32 v[{S2}:{S2+1}], v[{S2}:{S2+1}], v[{S2+2}:{S2+3}]")
    a(f"v_add_f32 v{S1}, v{S1}, v{S1+1}")
    a(f"v_add_f32 v{S2}, v{S2}, v{S2+1}")
    a("s_nop 1")
    a(f"v_permlane32_swap_b32 v{S1}, v{S2}")
    a("s_nop 1")
    a(f"v_add_f32 v{S1}, v{S1}, v{S2}")
    a(f"v_cmp_eq_u32 vcc, -1, v{S1}")
    a(f"v_mov_b32 v{S2}, 0x7fc00000")
    a("s_nop 0")
    a(f"v_cndmask_b32 v{S1}, v{S1}, v{S2}, vcc")
    a(f"buffer_store_dword v{S1}, v{vSl}, s[{SWS}:{SWS+3}], 0 offen sc1")
    stamp(3, vt[0], vt[1])
    PL = [128 + 4 * m for m in range(16)]
    vPo, vPo15 = 62, 63
    a(f"v_lshlrev_b32 v{vPo}, 4, v2")
    a(f"v_cmp_gt_u32 vcc, 48, v2")
    a(f"v_mov_b32 v{vt[4]}, 0x7ff00000")
    a("s_nop 0")
    a(f"v_cndmask_b32 v{vPo15}, v{vt[4]}, v{vPo}, vcc")

    def poll_load(m):
        vo = vPo15 if m == 15 else vPo
        return f"buffer_load_dwordx4 v[{PL[m]}:{PL[m]+3}], v{vo}, s[{SWS}:{SWS+3}], s{sPoll+(m>>2)} offen offset:{(m&3)*1024} sc1"

    for m in range(16):
        a(poll_load(m))
    for m in range(4):
        for r in range(0, 16, 2):
            o0 = (32 * m + (r >> 1)) * 2
            o1 = (32 * m + 8 + (r >> 1)) * 2
            a(f"ds_write2st64_b32 v{vT}, v{P[m]+r}, v{P[m]+r+1} offset0:{o0} offset1:{o1}")
    a("s_waitcnt lgkmcnt(0)")
    a("s_barrier")
    H = [64 + 8 * i for i in range(4)]

    def tread_setup_and_issue():
        a("v_and_b32 v3, 15, v0")
        a("v_lshrrev_b32 v4, 4, v0")
        a("v_lshlrev_b32 v5, 1, v3")
        a("v_lshrrev_b32 v6, 3, v3")
        a("v_xor_b32 v5, v5, v6")
        a("v_lshlrev_b32 v5, 4, v5")
        a("v_lshl_add_u32 v5, v4, 9, v5")
        a("v_xor_b32 v6, 16, v5")
        for i in range(4):
            a(f"ds_read_b128 v[{H[i]}:{H[i]+3}], v5 offset:{i*16384}")
            a(f"ds_read_b128 v[{H[i]+4}:{H[i]+7}], v6 offset:{i*16384}")
        a(f"s_lshl_b32 s{sTmp}, s{sC}, 8")
        a(f"v_lshl_add_u32 v8, v4, 9, s{sTmp}")
        a("v_lshl_add_u32 v8, v3, 4, v8")
        a("v_add_u32 v4, 96, v4")
        a(f"v_cmp_gt_u32 vcc, s{sNv}, v4")
        a("v_mov_b32 v9, 0x7ff00000")
        a("v_lshlrev_b32 v10, 5, v3")
        a("v_cndmask_b32 v9, v9, v8, vcc")
        a(f"v_add_u32 v10, {PAR}, v10")

    tread_setup_and_issue()
    a(f"s_mov_b32 s{sPend}, 0xffff")
    a(f"s_mov_b32 s{sSpin}, 0")
    a("s_branch L_check")
    a.label("L_poll")
    a(f"s_add_u32 s{sSpin}, s{sSpin}, 1")
    a(f"s_cmp_gt_u32 s{sSpin}, {SPIN_MAX}")
    a("s_cbranch_scc1 L_pdone")
    for m in range(16):
        lab = a.newlab("L_pl")
        a(f"s_bitcmp1_b32 s{sPend}, {m}")
        a(f"s_cbranch_scc0 {lab}")
        a(poll_load(m))
        a.label(lab)
    a.label("L_check")
    a("s_waitcnt vmcnt(0)")
    for m in range(16):
        lab = a.newlab("L_pc")
        a(f"s_bitcmp1_b32 s{sPend}, {m}")
        a(f"s_cbranch_scc0 {lab}")
        a(f"v_max3_u32 v{vt[0]}, v{PL[m]}, v{PL[m]+1}, v{PL[m]+2}")
        a(f"v_max_u32 v{vt[0]}, v{vt[0]}, v{PL[m]+3}")
        a(f"v_cmp_eq_u32 vcc, -1, v{vt[0]}")
        a("s_cmp_eq_u64 vcc, 0")
        a(f"s_cbranch_scc0 {lab}")
        a(f"s_bitset0_b32 s{sPend}, {m}")
        a.label(lab)
    a(f"s_cmp_lg_u32 s{sPend}, 0")
    a("s_cbranch_scc1 L_poll")
    a.label("L_pdone")
    stamp(4, vt[0], vt[1])
    step = 1
    while step < 16:
        for m in range(0, 16, 2 * step):
            for hh in range(2):
                d, s_ = PL[m] + 2 * hh, PL[m + step] + 2 * hh
                a(f"v_pk_add_f32 v[{d}:{d+1}], v[{d}:{d+1}], v[{s_}:{s_+1}]")
        step *= 2
    v0_, v1_, v2_, v3_ = PL[0], PL[0] + 1, PL[0] + 2, PL[0] + 3
    a("s_nop 1")
    a(f"v_permlane16_swap_b32 v{v0_}, v{v1_}")
    a(f"v_permlane16_swap_b32 v{v2_}, v{v3_}")
    a("s_nop 1")
    a(f"v_add_f32 v{v0_}, v{v0_}, v{v1_}")
    a(f"v_add_f32 v{v2_}, v{v2_}, v{v3_}")
    a("s_nop 1")
    a(f"v_permlane32_swap_b32 v{v0_}, v{v2_}")
    a("s_nop 1")
    a(f"v_add_f32 v{v0_}, v{v0_}, v{v2_}")
    a("s_nop 1")
    a(f"v_mov_b32_dpp v{v1_}, v{v0_} row_ror:8 row_mask:0xf bank_mask:0xf")
    c1 = -2.0 * math.sqrt(2.0 / math.pi) * math.log2(math.e)
    c2 = c1 * 0.044715
    sc = -((-c2) ** (1.0 / 3.0))
    a(f"v_mul_f32 v{v0_}, {hex(f2u(1.0/L_OUT))}, v{v0_}")
    a(f"v_mul_f32 v{v1_}, {hex(f2u(1.0/L_OUT))}, v{v1_}")
    a(f"v_fma_f32 v{v1_}, -v{v0_}, v{v0_}, v{v1_}")
    a(f"v_max_f32 v{v1_}, 0, v{v1_}")
    a(f"v_add_f32 v{v1_}, {hex(f2u(1e-5))}, v{v1_}")
    a(f"v_rsq_f32 v{v1_}, v{v1_}")
    a(f"v_lshlrev_b32 v{vG}, 16, v{vG}")
    a(f"v_lshlrev_b32 v{vBe}, 16, v{vBe}")
    a(f"v_mul_f32 v{vG}, {hex(f2u(sc))}, v{vG}")
    a(f"v_mul_f32 v{vBe}, {hex(f2u(sc))}, v{vBe}")
    a(f"v_mul_f32 v{v1_}, v{v1_}, v{vG}")
    a(f"v_fma_f32 v{v0_}, -v{v0_}, v{v1_}, v{vBe}")
    a(f"s_mov_b32 s{sTmp}, 0x00ff00ff")
    a(f"s_mov_b32 exec_lo, s{sTmp}")
    a(f"s_mov_b32 exec_hi, s{sTmp}")
    a(f"ds_write2_b32 v61, v{v1_}, v{v0_} offset0:0 offset1:128")
    a("s_mov_b64 exec, -1")
    a("s_waitcnt lgkmcnt(0)")
    a("s_barrier")
    a("s_branch L_epi")

    a.label("L_loader")
    a(f"s_sub_u32 s{sWave}, s{sWave}, 4")
    a("v_lshrrev_b32 v3, 3, v2")
    a("v_lshlrev_b32 v3, 10, v3")
    a(f"s_and_b32 s{sTmp}, s{sWave}, 1")
    a(f"s_lshl_b32 s{sTmp}, s{sTmp}, 2")
    a("v_lshrrev_b32 v4, 4, v2")
    a(f"v_add_u32 v4, s{sTmp}, v4")
    a("v_and_b32 v5, 7, v2")
    a("v_xor_b32 v4, v4, v5")
    a("v_lshl_add_u32 v3, v4, 4, v3")
    a("v_lshrrev_b32 v5, 4, v2")
    a("v_bfe_u32 v6, v2, 2, 2")
    a("v_xor_b32 v6, v6, v5")
    a("v_lshlrev_b32 v4, 9, v5")
    a("v_lshl_add_u32 v4, v6, 6, v4")
    a("v_and_b32 v6, 3, v2")
    a("v_lshl_add_u32 v4, v6, 4, v4")
    a(f"s_bfe_u32 s{sTmp}, s2, 0x50003")
    a(f"s_lshl_b32 s{sTmp}, s{sTmp}, 2")
    a(f"s_add_u32 s{sTmp}, s{sTmp}, s{sWave}")
    a(f"s_mul_i32 s{sTmp}, s{sTmp}, 3072")
    a("v_min_u32 v5, 47, v2")
    a(f"v_lshl_add_u32 v5, v5, 6, s{sTmp}")
    a(f"s_mul_i32 s{sXbE}, s{sBt}, {XB_BATCH}")
    a(f"s_mul_i32 s{sTmp}, s{sTt}, {TR*1024}")
    a(f"s_add_u32 s{sXbE}, s{sXbE}, s{sTmp}")
    a(f"s_lshl_b32 s{sTmp}, s{sWave}, 13")
    a(f"s_add_u32 s{sXbE}, s{sXbE}, s{sTmp}")
    a(f"s_add_u32 s{sXbO}, s{sXbE}, 512")
    a(f"s_lshl_b32 s{sXlE}, s{sWave}, 10")
    a(f"s_add_u32 s{sXlO}, s{sXlE}, 65536")
    a(f"s_cmp_eq_u32 s{sC}, 0")
    a(f"s_cselect_b32 s{sXb0}, s{sXbE}, s{sXbO}")
    a(f"s_cselect_b32 s{sXb1}, s{sXbO}, s{sXbE}")
    a(f"s_cselect_b32 s{sXl0}, s{sXlE}, s{sXlO}")
    a(f"s_cselect_b32 s{sXl1}, s{sXlO}, s{sXlE}")
    a(f"s_lshl_b32 s{sWb}, s{sWave}, 11")
    a(f"s_lshl_b32 s{sTmp}, s{sC}, 8")
    a(f"s_add_u32 s{sWb}, s{sWb}, s{sTmp}")
    a(f"s_lshl_b32 s{sWl}, s{sWave}, 10")
    a(f"s_add_u32 s{sWl}, s{sWl}, {RING}")

    issued = []

    def dma_x(which, j, qq, tag):
        sb, sl = {"E": (sXbE, sXlE), "O": (sXbO, sXlO), 0: (sXb0, sXl0), 1: (sXb1, sXl1)}[which]
        a(f"s_add_u32 m0, s{sl}, {j*16384+qq*4096}")
        a(f"s_add_u32 s{sOff}, s{sb}, {qq*32768+j*128}")
        a(f"buffer_load_dwordx4 v3, s[{SX}:{SX+3}], s{sOff} offen{XNT} lds")
        issued.append(tag)

    def dma_w(s):
        kind, j, q = stages[s]
        rows = [0 * 256 + 64 * j + 16 * q, 2 * 256 + 64 * j + 16 * q] if kind == "E" else \
            [256 + 64 * j + 32 * q, 256 + 64 * j + 32 * q + 16]
        for x in range(2):
            sl = (2 * s + x) % 8
            a(f"s_add_u32 m0, s{sWl}, {sl*4096}")
            a(f"s_add_u32 s{sOff}, s{sWb}, {rows[x]*512}")
            a(f"buffer_load_dwordx4 v4, s[{SW}:{SW+3}], s{sOff} offen lds")
            issued.append(("W", s))

    def need_tags(s):
        kind, j, q = stages[s]
        t = {("W", s)}
        if j == 0:
            t.add(("X", kind, 0))
        else:
            t.add(("X", "any", j))
        return t

    def bar(s_needed):
        if s_needed is not None:
            need = need_tags(s_needed)
            last = max(i for i, t in enumerate(issued) if t in need)
            for t in need:
                assert t in issued, t
            n = len(issued) - 1 - last
            a(f"s_waitcnt vmcnt({min(n,63)})")
        a("s_barrier")

    if opt.wpf:
        a(f"buffer_load_dword v6, v5, s[{SW}:{SW+3}], 0 offen")
        issued.append(("PF",))
    for qq in range(4):
        dma_x("E", 0, qq, ("X", "E", 0))
    dma_w(0)
    dma_w(1)
    for qq in range(4):
        dma_x("O", 0, qq, ("X", "O", 0))
    dma_w(2)
    dma_w(3)
    xsched = {}
    for j in range(1, 4):
        items = [(0, j, qq) for qq in range(4)] + [(1, j, qq) for qq in range(4)]
        base = 6 * (j - 1) - 1
        cnts = opt.xcnt
        k = 0
        for d, n in enumerate(cnts):
            for _ in range(n):
                xsched.setdefault(base + d, []).append(items[k])
                k += 1
        assert k == 8
    for it in xsched.get(-1, []):
        dma_x(it[0], it[1], it[2], ("X", "any", it[1]))
    bar(0)
    vCnt = 7
    for s in range(NS):
        if s == NS - 2:
            a(f"s_mov_b32 s{sSpin}, 0")
            a.label("L_cnt")
            a("s_waitcnt vmcnt(0)")
            a(f"s_add_u32 s{sSpin}, s{sSpin}, 1")
            a(f"s_cmp_gt_u32 s{sSpin}, {SPIN_MAX}")
            a("s_cbranch_scc1 L_cnt_ok")
            a(f"v_readfirstlane_b32 s{sTmp}, v{vCnt}")
            a(f"s_cmp_ge_u32 s{sTmp}, {NTILE}")
            a("s_cbranch_scc1 L_cnt_ok")
            a(f"buffer_load_dword v{vCnt}, off, s[{SDBG}:{SDBG+3}], s{sTmp2} sc1")
            a("s_branch L_cnt")
            a.label("L_cnt_ok")
            a("s_barrier")
        else:
            bar(s + 1 if s + 1 < NS else None)
        if s + 4 < NS:
            dma_w(s + 4)
        for it in xsched.get(s, []):
            dma_x(it[0], it[1], it[2], ("X", "any", it[1]))
        if s + 4 == NS - 1:
            a(f"s_lshl_b32 s{sTmp2}, s{sGrp}, 6")
            a(f"buffer_load_dword v{vCnt}, off, s[{SDBG}:{SDBG+3}], s{sTmp2} sc1")
            issued.append(("CNT",))
    a("s_barrier")
    tread_setup_and_issue()
    a("s_barrier")

    a.label("L_epi")
    SCL, SHF = 16, 24
    a(f"ds_read_b128 v[{SCL}:{SCL+3}], v10")
    a(f"ds_read_b128 v[{SCL+4}:{SCL+7}], v10 offset:16")
    a(f"ds_read_b128 v[{SHF}:{SHF+3}], v10 offset:512")
    a(f"ds_read_b128 v[{SHF+4}:{SHF+7}], v10 offset:528")
    k1 = c1 / sc
    a(f"s_mov_b32 s{sK}, {hex(f2u(k1))}")
    a(f"s_mov_b32 s{sK+1}, {hex(f2u(k1))}")
    a(f"s_mov_b32 s{sK+2}, {hex(f2u(sc))}")
    a(f"s_mov_b32 s{sK+3}, {hex(f2u(sc))}")
    a("s_waitcnt lgkmcnt(0)")
    W_, O_ = 32, 48
    for i in range(4):
        h = H[i]
        w_ = W_ + 8 * (i & 1)
        o_ = O_ + 4 * (i & 1)
        for p in range(4):
            a(f"v_pk_fma_f32 v[{h+2*p}:{h+2*p+1}], v[{h+2*p}:{h+2*p+1}], v[{SCL+2*p}:{SCL+2*p+1}], v[{SHF+2*p}:{SHF+2*p+1}]")
        for p in range(4):
            a(f"v_pk_fma_f32 v[{w_+2*p}:{w_+2*p+1}], v[{h+2*p}:{h+2*p+1}], v[{h+2*p}:{h+2*p+1}], s[{sK}:{sK+1}]")
        for p in range(4):
            a(f"v_pk_mul_f32 v[{w_+2*p}:{w_+2*p+1}], v[{w_+2*p}:{w_+2*p+1}], v[{h+2*p}:{h+2*p+1}]")
        for e in range(8):
            a(f"v_exp_f32 v{w_+e}, v{w_+e}")
        for p in range(4):
            a(f"v_pk_fma_f32 v[{w_+2*p}:{w_+2*p+1}], v[{w_+2*p}:{w_+2*p+1}], s[{sK+2}:{sK+3}], s[{sK+2}:{sK+3}]")
        for e in range(8):
            a(f"v_rcp_f32 v{w_+e}, v{w_+e}")
        for p in range(4):
            a(f"v_pk_mul_f32 v[{w_+2*p}:{w_+2*p+1}], v[{w_+2*p}:{w_+2*p+1}], v[{h+2*p}:{h+2*p+1}]")
        for p in range(4):
            a(f"v_cvt_pk_bf16_f32 v{o_+p}, v{w_+2*p}, v{w_+2*p+1}")
        vo = 9 if i == 3 else 8
        a(f"buffer_store_dwordx4 v[{o_}:{o_+3}], v{vo}, s[{SO}:{SO+3}], s{sOutB+i} offen{ONT}")
    if STAMP:
        a(f"s_cmp_lg_u32 s{sWave}, 0")
        a("s_cbranch_scc1 L_end")
        a("v_cmp_gt_u32 vcc, 64, v0")
        a("s_cbranch_vccz L_end")
        stamp(5, 232, 233)
        a("s_waitcnt vmcnt(0)")
        stamp(6, 232, 233)
    if opt.dbl:
        a("v_cmp_gt_u32 vcc, 64, v0")
        a("s_cbranch_vccz L_end")
        a("s_waitcnt vmcnt(0)")
        a("s_memrealtime s[90:91]")
        a("s_waitcnt lgkmcnt(0)")
        a("s_sub_u32 s94, s90, s98")
        if opt.dbl > 1:
            a(f"s_mov_b32 s94, {opt.dbl}")
        a("L_dbl:")
        a("s_memrealtime s[92:93]")
        a("s_waitcnt lgkmcnt(0)")
        a("s_sub_u32 s95, s92, s90")
        a("s_cmp_lt_u32 s95, s94")
        a("s_cbranch_scc1 L_dbl")
    if opt.dbgstamp:
        a("v_cmp_gt_u32 vcc, 64, v0")
        a("s_cbranch_vccz L_end")
        a("s_waitcnt vmcnt(0)")
        a("s_memrealtime s[90:91]")
        a("s_memtime s[92:93]")
        a("s_waitcnt lgkmcnt(0)")
        a("s_mov_b64 exec, 1")
        a("v_mov_b32 v1, s90")
        a(f"buffer_atomic_umax v1, off, s[{SDBG}:{SDBG+3}], 0 offset:4 sc1")
        a("s_not_b32 s94, s98")
        a("v_mov_b32 v2, s94")
        a(f"buffer_atomic_umax v2, off, s[{SDBG}:{SDBG+3}], 0 offset:8 sc1")
        a("s_sub_u32 s94, s90, s98")
        a("v_mov_b32 v3, s94")
        a(f"buffer_atomic_umax v3, off, s[{SDBG}:{SDBG+3}], 0 offset:12 sc1")
        a("s_sub_u32 s94, s92, s100")
        a("v_mov_b32 v4, s94")
        a(f"buffer_atomic_umax v4, off, s[{SDBG}:{SDBG+3}], 0 offset:16 sc1")
        a("v_mov_b32 v5, s97")
        a(f"buffer_atomic_umax v5, off, s[{SDBG}:{SDBG+3}], 0 offset:20 sc1")
        a("v_mov_b32 v6, s83")
        a(f"buffer_atomic_umax v6, off, s[{SDBG}:{SDBG+3}], 0 offset:24 sc1")
    a.label("L_end")
    a("s_endpgm")

    hdr = open("cdna_kernels/%s.s.ref" % NAME).read().split("\n")
    head = []
    for ln in hdr:
        if ln.startswith("; @launch"):
            head.append("; @launch grid=(254,1,1) block=(512,1,1) lds=163840")
            break
        head.append(ln)
    out = "\n".join(head) + "\n"
    out += f""".amdgcn_target "amdgcn-amd-amdhsa--gfx950"
.text
.globl {NAME}_kernel
.p2align 8
.type {NAME}_kernel,@function
{NAME}_kernel:
"""
    out += a.text()
    out += f""".section .rodata,"a"
.p2align 6
.amdhsa_kernel {NAME}_kernel
  .amdhsa_next_free_vgpr 256
  .amdhsa_next_free_sgpr 102
  .amdhsa_accum_offset 256
  .amdhsa_group_segment_fixed_size 0
  .amdhsa_kernarg_size 56
  .amdhsa_user_sgpr_count 2
  .amdhsa_user_sgpr_kernarg_segment_ptr 1
  .amdhsa_system_sgpr_workgroup_id_x 1
.end_amdhsa_kernel
"""
    return out


if __name__ == "__main__":
    ap = argparse.ArgumentParser()
    ap.add_argument("-o", default="cdna_kernels/%s.s" % NAME)
    ap.add_argument("--stamp", type=int, default=0)
    ap.add_argument("--dbgstamp", type=int, default=0)
    ap.add_argument("--dbl", type=int, default=0)
    ap.add_argument("--xnt", type=int, default=1)
    ap.add_argument("--wpf", type=int, default=1)
    ap.add_argument("--ostore", default="")
    ap.add_argument("--xcnt", default="2,2,2,2,0,0")
    o = ap.parse_args()
    o.xcnt = [int(v) for v in o.xcnt.split(",")]
    if o.ostore:
        o.ostore = " " + o.ostore.replace("+", " ")
    open(o.o, "w").write(gen(o))
```

```python
import sys, math, struct, argparse

NAME = "standalone__self_sup_conv_stem_wavlm__speech"
L_OUT = 7999
TR = 127
NTILE = 63
XB_BATCH = 16000 * 512
X_BYTES = 2 * XB_BATCH
W_BYTES = 3 * 256 * 256 * 2
OUT_BYTES = 2 * L_OUT * 512
RING = 98304
NSLOT = 7
FLG = RING + NSLOT * 8192
PAR = FLG + 2048
NON = FLG + 3072
RDY = 0x40000
SPIN_MAX = 200000


def f2u(f):
    return struct.unpack("<I", struct.pack("<f", f))[0]


class Asm:
    def __init__(self):
        self.lines = []
        self.lab = 0

    def __call__(self, s):
        self.lines.append("    " + s)

    def label(self, n):
        self.lines.append(n + ":")

    def newlab(self, p="L"):
        self.lab += 1
        return f"{p}_{self.lab}"

    def c(self, s):
        self.lines.append("    ; " + s)

    def text(self):
        return "\n".join(self.lines) + "\n"


def xslot(kind, j):
    return 2 * (j % 3) + (0 if kind == "E" else 1)


def build_stream(spec):
    def X(which, j):
        return [("x", which, j, qq) for qq in range(4)]

    def Wu(u):
        return [("w", u, 0), ("w", u, 1)]

    def one(t):
        if t == "P":
            return [("pf",)]
        if t == "F":
            return [("fl",)]
        n = int(t[1:])
        if t[0] == "H":
            return X(0, n)
        if t[0] == "L":
            return X(1, n)
        if t[0] == "W":
            return Wu(3 * n) + Wu(3 * n + 1) + Wu(3 * n + 2)
        if t[0] == "U":
            return Wu(n)
        raise ValueError(t)

    def mix(a, b):
        out = []
        ia = ib = 0
        while ia < len(a) or ib < len(b):
            if ib >= len(b) or (ia < len(a) and ia * len(b) <= ib * len(a)):
                out.append(a[ia]); ia += 1
            else:
                out.append(b[ib]); ib += 1
        return out

    S = []
    for tok in spec.split():
        parts = [sum((one(t) for t in p.split(",")), []) for p in tok.split("+")]
        cur = parts[0]
        for p in parts[1:]:
            cur = mix(cur, p)
        S += cur
    assert len([t for t in S if t[0] not in ("pf", "fl")]) == 80 and len(set(S)) == len(S), (len(S), spec)
    return S


def gen(opt):
    a = Asm()
    STAMP = opt.stamp
    XPOL = [(" " + p.replace("+", " ")) if p != "-" else "" for p in opt.xpol.split(",")]
    ONT = opt.ostore
    D = opt.depth

    SX, SW, SO, SWS, SDBG, SG, SB = 20, 24, 28, 32, 36, 40, 44
    sT, sC, sBt, sTt, sGrp, sWave, sTmp, sTmp2 = 48, 49, 50, 51, 52, 53, 54, 55
    sXb0, sXb1, sXl0, sXl1, sWb, sWl, sOff = 56, 57, 58, 59, 60, 61, 62
    sLvl = 63
    sMask3, sMaskLast, sMaskG1 = 64, 66, 68
    sSlot = 70
    sPoll = 71
    sOutB = 75
    sNv = 79
    sK = 80
    sSt = 84
    sStB = 86
    sSpin = 87
    sEx = 88
    sPc = 90
    sAny = 92
    sPub = 93
    sSent, sFlagged = 90, 91
    sPM = 4

    def srd(d, p, nbytes):
        a(f"s_mov_b32 s{d}, s{p}")
        a(f"s_and_b32 s{d+1}, s{p+1}, 0xffff")
        a(f"s_mov_b32 s{d+2}, {nbytes}")
        a(f"s_mov_b32 s{d+3}, 0x20000")

    def stamp(idx, vt0, vt1):
        if not STAMP:
            return
        a(f"s_memrealtime s[{sSt}:{sSt+1}]")
        a("s_memtime s[98:99]")
        a("s_waitcnt lgkmcnt(0)")
        a(f"v_mov_b32 v{vt0}, s{sSt}")
        a(f"v_mov_b32 v{vt1}, s98")
        a(f"s_mov_b64 s[{sEx}:{sEx+1}], exec")
        a("s_mov_b64 exec, 1")
        a(f"buffer_store_dwordx2 v[{vt0}:{vt1}], off, s[{SWS}:{SWS+3}], s{sStB} offset:{idx*8}")
        a(f"s_mov_b64 exec, s[{sEx}:{sEx+1}]")

    trc = {"n": 0, "names": []}

    def trace(name):
        if not opt.trace:
            return
        if trc["n"] >= 128:
            return
        a("s_memtime s[100:101]")
        a("s_waitcnt lgkmcnt(0)")
        a(f"v_writelane_b32 v{62 if trc['n'] < 64 else 61}, s100, {trc['n'] % 64}")
        trc["names"].append(name)
        trc["n"] += 1

    def trace_dump(half):
        if not opt.trace:
            return
        lab = a.newlab("L_td")
        a(f"s_cmp_lg_u32 s{sWave}, 0")
        a(f"s_cbranch_scc1 {lab}")
        a(f"s_lshl_b32 s{sTmp}, s2, 10")
        a(f"s_add_u32 s{sTmp}, s{sTmp}, {0x180000 + half*512}")
        a("v_lshlrev_b32 v63, 2, v2")
        a(f"buffer_store_dword v62, v63, s[{SWS}:{SWS+3}], s{sTmp} offen")
        a(f"buffer_store_dword v61, v63, s[{SWS}:{SWS+3}], s{sTmp} offen offset:256")
        a.label(lab)
        sys.stderr.write(f"TRACE{half}: " + ",".join(trc["names"]) + "\n")
        trc["n"] = 0
        trc["names"] = []

    if STAMP:
        a("s_memrealtime s[94:95]")
        a("s_memtime s[96:97]")
    a("s_load_dwordx8 s[4:11], s[0:1], 0")
    a("s_load_dwordx4 s[12:15], s[0:1], 32")
    a("s_load_dwordx2 s[16:17], s[0:1], 48")
    a(f"s_lshr_b32 s{sTmp}, s2, 4")
    a(f"s_lshl_b32 s{sTmp}, s{sTmp}, 3")
    a(f"s_and_b32 s{sTmp2}, s2, 7")
    a(f"s_add_u32 s{sT}, s{sTmp}, s{sTmp2}")
    a(f"s_cmp_ge_u32 s{sT}, {2*NTILE}")
    a("s_cbranch_scc1 L_end")
    a("v_lshrrev_b32 v1, 6, v0")
    a("v_and_b32 v2, 63, v0")
    a(f"v_readfirstlane_b32 s{sWave}, v1")
    a(f"s_bfe_u32 s{sC}, s2, 0x10003")
    a(f"s_cmp_ge_u32 s{sT}, {NTILE}")
    a(f"s_cselect_b32 s{sBt}, 1, 0")
    a(f"s_mul_i32 s{sTmp}, s{sBt}, {NTILE}")
    a(f"s_sub_u32 s{sTt}, s{sT}, s{sTmp}")
    a(f"s_cmp_lt_u32 s{sWave}, 4")
    a("s_cbranch_scc1 L_compute")

    def common_late():
        a(f"s_lshl_b32 s{sGrp}, s{sBt}, 1")
        a(f"s_add_u32 s{sGrp}, s{sGrp}, s{sC}")
        a(f"s_cmp_eq_u32 s{sTt}, {NTILE-1}")
        a(f"s_cselect_b32 s{sNv}, {TR - (L_OUT - TR*(NTILE-1))}, 0")
        a(f"s_sub_u32 s{sNv}, {TR}, s{sNv}")
        a(f"s_lshl_b32 s{sStB}, s2, 8")
        a(f"s_add_u32 s{sStB}, s{sStB}, 0x100000")
        srd(SO, 12, OUT_BYTES)
        srd(SWS, 16, 0x200000 if STAMP else 0x48000)
        srd(SDBG, 14, 256)
        a(f"s_mul_i32 s{sTmp}, s{sBt}, {L_OUT}")
        a(f"s_mul_i32 s{sTmp2}, s{sTt}, {TR}")
        a(f"s_add_u32 s{sTmp}, s{sTmp}, s{sTmp2}")
        a(f"s_lshl_b32 s{sOutB}, s{sTmp}, 9")
        for i in range(1, 4):
            a(f"s_add_u32 s{sOutB+i}, s{sOutB}, {i*16384}")

    a(f"s_sub_u32 s{sWave}, s{sWave}, 4")
    a("v_lshrrev_b32 v5, 3, v2")
    a("v_lshlrev_b32 v5, 10, v5")
    a(f"s_lshl_b32 s{sTmp}, s{sWave}, 1")
    a("v_and_b32 v6, 7, v2")
    a(f"v_xor_b32 v6, s{sTmp}, v6")
    a("v_lshl_add_u32 v3, v6, 4, v5")
    a("v_xor_b32 v4, 16, v3")
    a("v_lshrrev_b32 v6, 4, v2")
    a(f"s_lshr_b32 s{sTmp}, s{sWave}, 1")
    a(f"s_lshl_b32 s{sTmp}, s{sTmp}, 2")
    a(f"v_or_b32 v7, s{sTmp}, v6")
    a("v_bfe_u32 v8, v2, 1, 3")
    a("v_xor_b32 v7, v7, v8")
    a("v_lshlrev_b32 v5, 9, v6")
    a("v_lshl_add_u32 v5, v7, 5, v5")
    a("v_and_b32 v7, 1, v2")
    a("v_lshl_add_u32 v5, v7, 4, v5")
    a(f"s_bfe_u32 s{sTmp}, s2, 0x50003")
    a(f"s_lshl_b32 s{sTmp}, s{sTmp}, 2")
    a(f"s_add_u32 s{sTmp}, s{sTmp}, s{sWave}")
    a(f"s_mul_i32 s{sTmp}, s{sTmp}, 3072")
    a("v_min_u32 v6, 47, v2")
    a(f"v_lshl_add_u32 v6, v6, 6, s{sTmp}")
    a(f"s_mul_i32 s{sXb0}, s{sBt}, {XB_BATCH}")
    a(f"s_mul_i32 s{sTmp}, s{sTt}, {TR*1024}")
    a(f"s_add_u32 s{sXb0}, s{sXb0}, s{sTmp}")
    a(f"s_lshl_b32 s{sTmp}, s{sWave}, 15")
    a(f"s_add_u32 s{sXb0}, s{sXb0}, s{sTmp}")
    a(f"s_lshl_b32 s{sTmp}, s{sC}, 9")
    a(f"s_xor_b32 s{sTmp2}, s{sTmp}, 512")
    a(f"s_add_u32 s{sXb1}, s{sXb0}, s{sTmp2}")
    a(f"s_add_u32 s{sXb0}, s{sXb0}, s{sTmp}")
    a(f"s_lshl_b32 s{sXl0}, s{sWave}, 12")
    a(f"s_add_u32 s{sXl1}, s{sXl0}, 65536")
    a(f"s_lshl_b32 s{sWb}, s{sWave}, 11")
    a(f"s_lshl_b32 s{sTmp}, s{sC}, 8")
    a(f"s_add_u32 s{sWb}, s{sWb}, s{sTmp}")
    a(f"s_lshl_b32 s{sWl}, s{sWave}, 10")
    a(f"s_add_u32 s{sWl}, s{sWl}, {RING}")
    RX0, RX1, RW = [64, 65, 66, 67], [71, 72, 73, 74], [80, 81, 82, 83]
    for j in range(4):
        if opt.rot:
            a(f"s_lshr_b32 s{sTmp}, s2, 4")
            a(f"s_add_u32 s{sTmp}, s{sTmp}, {j}")
            a(f"s_and_b32 s{sTmp}, s{sTmp}, 3")
        else:
            a(f"s_mov_b32 s{sTmp}, {j}")
        a(f"s_lshl_b32 s{sTmp2}, s{sTmp}, 7")
        a(f"s_add_u32 s{RX0[j]}, s{sXb0}, s{sTmp2}")
        a(f"s_add_u32 s{RX1[j]}, s{sXb1}, s{sTmp2}")
        a(f"s_lshl_b32 s{sTmp2}, s{sTmp}, 15")
        a(f"s_add_u32 s{RW[j]}, s{sWb}, s{sTmp2}")
    a(f"s_lshl_b32 s{sTmp}, s{sWave}, 2")
    a(f"v_lshl_add_u32 v9, v2, 4, s{sTmp}")
    a(f"v_add_u32 v9, {FLG}, v9")
    a(f"v_mov_b32 v10, {FLG+1024}")
    a(f"s_mov_b32 s{sPub}, 0")
    a(f"s_mov_b32 s{sLvl}, 0")
    a("s_waitcnt lgkmcnt(0)")
    srd(SX, 4, X_BYTES)
    srd(SW, 6, W_BYTES)
    trace("start")

    specs = opt.order.split("/")
    ncls = len(specs)
    if ncls > 1:
        a(f"s_and_b32 s{sTmp}, s{sT}, {ncls//2 - 1}")
        a(f"s_lshl_b32 s{sTmp}, s{sTmp}, 1")
        a(f"s_add_u32 s{sTmp}, s{sTmp}, s{sC}")
        for ci in range(1, ncls):
            a(f"s_cmp_eq_u32 s{sTmp}, {ci}")
            a(f"s_cbranch_scc1 L_cls{ci}")

    def emit_loader(spec):
        stream = build_stream(spec)
        if opt.skipdma:
            stream = [it for i, it in enumerate(stream) if i < 2 * D + 3 or not (
                opt.skipdma == 3 or (opt.skipdma == 1 and it[0] == "x") or (opt.skipdma == 2 and it[0] == "w")
                or (opt.skipdma == 4 and it[0] == "x" and it[1] == 1) or (opt.skipdma == 5 and it[0] == "x" and it[1] == 0))]
        pos = {it: i for i, it in enumerate(stream)}
        lastreq = []
        for k in range(8):
            req = [("w", u, h) for u in range(3 * k, 3 * k + 3) for h in range(2)]
            req += [("x", wh, k // 2, qq) for wh in range(2) for qq in range(4)]
            lr = max(pos.get(r, 0) for r in req)
            if lastreq:
                lr = max(lr, lastreq[-1])
            lastreq.append(lr)
        milestone = {}
        for k in range(8):
            milestone[lastreq[k]] = k + 1

        def need_done(it):
            if opt.freerun:
                return 0
            if it[0] == "w" and it[1] >= NSLOT:
                return it[1] - NSLOT + 1
            if it[0] == "x" and it[1] == 1 and it[2] >= 2:
                return 6 * it[2] - 3
            return 0

        def publish(i):
            if i in milestone:
                a(f"v_mov_b32 v11, {milestone[i]}")
                a("ds_max_u32 v9, v11")
                a(f"s_max_u32 s{sPub}, s{sPub}, {milestone[i]}")

        have = 0
        n = len(stream)
        for i, it in enumerate(stream):
            nd = need_done(it)
            if nd > have:
                lab, lab2 = a.newlab("L_dn"), a.newlab("L_dnok")
                a(f"s_cmp_ge_u32 s{sLvl}, {nd}")
                a(f"s_cbranch_scc1 {lab2}")
                assert lastreq[(nd - 1) // 3] < i, ("deadlock", it)
                assert i >= D
                def poll_done():
                    a("ds_read_b128 v[12:15], v10")
                    a("s_waitcnt lgkmcnt(0)")
                    a("v_min3_u32 v12, v12, v13, v14")
                    a("v_min_u32 v12, v12, v15")
                    a("s_nop 0")
                    a(f"v_readfirstlane_b32 s{sLvl}, v12")
                    a(f"s_cmp_ge_u32 s{sLvl}, {nd}")
                    a(f"s_cbranch_scc1 {lab2}")
                a(f"s_mov_b32 s{sSpin}, 0")
                a.label(lab)
                poll_done()
                pend = [p for p in sorted(milestone) if i - 1 - D < p < i]
                if pend:
                    a(f"s_getreg_b32 s{sTmp}, hwreg(HW_REG_IB_STS, 0, 4)")
                    a(f"s_getreg_b32 s{sTmp2}, hwreg(HW_REG_IB_STS, 22, 2)")
                    a(f"s_lshl_b32 s{sTmp2}, s{sTmp2}, 4")
                    a(f"s_or_b32 s{sTmp}, s{sTmp}, s{sTmp2}")
                    a(f"s_cmp_gt_u32 s{sSpin}, 64")
                    a(f"s_cselect_b32 s{sTmp}, 0, s{sTmp}")
                for p in pend:
                    sk = a.newlab("L_sk")
                    a(f"s_cmp_ge_u32 s{sPub}, {milestone[p]}")
                    a(f"s_cbranch_scc1 {sk}")
                    a(f"s_cmp_gt_u32 s{sTmp}, {i - 1 - p}")
                    a(f"s_cbranch_scc1 {sk}")
                    a(f"s_waitcnt vmcnt({i - 1 - p})")
                    publish(p)
                    a.label(sk)
                a(f"s_add_u32 s{sSpin}, s{sSpin}, 1")
                a(f"s_cmp_gt_u32 s{sSpin}, {SPIN_MAX*8}")
                a(f"s_cbranch_scc1 {lab2}")
                if opt.sleep:
                    a(f"s_sleep {opt.sleep}")
                a(f"s_branch {lab}")
                a.label(lab2)
                if opt.trace == 1:
                    trace(f"dn{nd}")
                have = nd
            if it[0] == "x":
                _, wh, j, qq = it
                sb, sl = (RX0[j], sXl0) if wh == 0 else (RX1[j], sXl1)
                a(f"s_add_u32 m0, s{sl}, {(j if wh == 0 else (j & 1))*16384+qq*1024}")
                a(f"s_add_u32 s{sOff}, s{sb}, {qq*8192}")
                a(f"buffer_load_dwordx4 v{3+(qq>>1)}, s[{SX}:{SX+3}], s{sOff} offen{XPOL[wh]} lds")
            elif it[0] == "w":
                _, u, h = it
                k, tap = u // 3, u % 3
                a(f"s_add_u32 m0, s{sWl}, {(u%NSLOT)*8192+h*4096}")
                a(f"s_add_u32 s{sOff}, s{RW[k//2]}, {(tap*256+32*(k%2)+16*h)*512}")
                a(f"buffer_load_dwordx4 v5, s[{SW}:{SW+3}], s{sOff} offen lds")
            elif it[0] == "fl":
                assert i >= D
                a(f"buffer_load_dwordx2 v[16:17], v18, s[{SWS}:{SWS+3}], 0 offen sc1")
            else:
                a(f"buffer_load_dword v8, v6, s[{SW}:{SW+3}], 0 offen")
            if i == D - 1:
                a("s_barrier")
                common_late()
                a("v_and_b32 v18, 15, v2")
                a(f"s_lshl_b32 s{sTmp}, s{sWave}, 4")
                a(f"v_add_u32 v18, s{sTmp}, v18")
                a("v_min_u32 v18, 62, v18")
                a(f"s_lshl_b32 s{sTmp}, s{sGrp}, 13")
                a(f"s_add_u32 s{sTmp}, s{sTmp}, {RDY}")
                a(f"v_lshl_add_u32 v18, v18, 7, s{sTmp}")
            if i >= D:
                if (i - D) in milestone:
                    a(f"s_waitcnt vmcnt({D})")
                    publish(i - D)
                    trace(f"pub{milestone[i-D]}")
                elif opt.throttle:
                    a(f"s_waitcnt vmcnt({D})")
                    if opt.trace == 2:
                        trace("".join(str(z) for z in stream[i - D]))
        for i in range(n - D, n):
            if i in milestone:
                a(f"s_waitcnt vmcnt({n - 1 - i})")
                publish(i)

    for ci, spec in enumerate(specs):
        a.label(f"L_cls{ci}")
        emit_loader(spec)
        if ci + 1 < ncls:
            a("s_branch L_ldone")
    a.label("L_ldone")
    a(f"v_mov_b32 v19, {NON}")
    a(f"v_mov_b32 v22, {FLG}")
    a(f"s_mov_b32 s{sSpin}, 0")
    a.label("L_alw")
    a("ds_read_b128 v[12:15], v22")
    a("ds_read_b64 v[20:21], v19")
    a("s_waitcnt lgkmcnt(0)")
    a("v_min3_u32 v12, v12, v13, v14")
    a("v_min_u32 v12, v12, v15")
    a("v_cmp_gt_u32 vcc, 8, v12")
    a(f"v_cmp_eq_u32 s[{sEx}:{sEx+1}], 0, v20")
    a(f"s_or_b64 vcc, vcc, s[{sEx}:{sEx+1}]")
    a("s_cbranch_scc0 L_cnt")
    a(f"s_add_u32 s{sSpin}, s{sSpin}, 1")
    a(f"s_cmp_gt_u32 s{sSpin}, {SPIN_MAX*8}")
    a("s_cbranch_scc1 L_cnt")
    a("s_sleep 1")
    a("s_branch L_alw")
    a.label("L_cnt")
    a(f"buffer_load_dwordx2 v[16:17], v18, s[{SWS}:{SWS+3}], 0 offen sc1")
    a("s_waitcnt vmcnt(0)")
    a("v_cmp_ne_u64 vcc, v[16:17], v[20:21]")
    a("s_cbranch_vccz L_cnt_ok")
    a(f"s_add_u32 s{sSpin}, s{sSpin}, 1")
    a(f"s_cmp_gt_u32 s{sSpin}, {SPIN_MAX*8}")
    a("s_cbranch_scc1 L_cnt_ok")
    a("s_sleep 4")
    a("s_branch L_cnt")
    a.label("L_cnt_ok")
    trace("end")
    trace_dump(0)
    H = [64 + 8 * i for i in range(4)]

    def tread_setup():
        a("v_and_b32 v3, 15, v0")
        a("v_lshrrev_b32 v4, 4, v0")
        a("v_lshlrev_b32 v5, 1, v3")
        a("v_lshrrev_b32 v6, 3, v3")
        a("v_xor_b32 v5, v5, v6")
        a("v_lshlrev_b32 v5, 4, v5")
        a("v_lshl_add_u32 v5, v4, 9, v5")
        a("v_xor_b32 v6, 16, v5")
        a(f"s_lshl_b32 s{sTmp}, s{sC}, 8")
        a(f"v_lshl_add_u32 v8, v4, 9, s{sTmp}")
        a("v_lshl_add_u32 v8, v3, 4, v8")
        a("v_add_u32 v4, 96, v4")
        a(f"v_cmp_gt_u32 vcc, s{sNv}, v4")
        a("v_mov_b32 v9, 0x7ff00000")
        a("v_lshlrev_b32 v10, 5, v3")
        a("v_cndmask_b32 v9, v9, v8, vcc")
        a(f"v_add_u32 v10, {PAR}, v10")

    def tread_issue():
        for i in range(4):
            a(f"ds_read_b128 v[{H[i]}:{H[i]+3}], v5 offset:{i*16384}")
            a(f"ds_read_b128 v[{H[i]+4}:{H[i]+7}], v6 offset:{i*16384}")

    a("s_waitcnt lgkmcnt(0)")
    tread_setup()
    a("s_barrier")
    a("s_barrier")
    tread_issue()
    a("s_barrier")
    a("s_branch L_epi")

    a.label("L_compute")
    P = [64, 96]
    Q = [128, 160]
    FB = [[192 + 24 * s + 4 * i for i in range(6)] for s in range(2)]
    NAG = 4
    FA = [[8 + 8 * g, 12 + 8 * g] for g in range(NAG)]
    vA = [[[40, 41], [42, 43]], [[248, 249], [250, 251]]]
    vA0 = 252
    sAo = [[56, 57, 58, 59], [60, 61, 62, 63]]
    vB = [44, 45]
    vSl, vG, vBe = 46, 47, 48
    vT = [49, 50]
    vFl, vDn, vPar = 51, 52, 53
    vPo, vPo15 = 54, 55
    vF = 56
    vt = [240 + i for i in range(8)]

    def code_prefetch():
        lab = a.newlab("L_ncp")
        a(f"s_cmp_lg_u32 s{sWave}, 3")
        a(f"s_cbranch_scc1 {lab}")
        a(f"s_getpc_b64 s[{sPc}:{sPc+1}]")
        a.label("L_pcref")
        a(f"s_sub_u32 s{sPc}, s{sPc}, L_pcref-{NAME}_kernel")
        a(f"s_subb_u32 s{sPc+1}, s{sPc+1}, 0")
        a(f"s_bfe_u32 s{sTmp}, s2, 0x50003")
        a(f"s_mul_i32 s{sTmp}, s{sTmp}, {opt.cpf*64}")
        a(f"v_min_u32 v3, {opt.cpf-1}, v2")
        a(f"v_lshl_add_u32 v3, v3, 6, s{sTmp}")
        a(f"v_min_u32 v3, L_codeend-{NAME}_kernel-4, v3")
        a(f"global_load_dword v60, v3, s[{sPc}:{sPc+1}]")
        a.label(lab)

    if opt.cpf:
        code_prefetch()
    a(f"v_mov_b32 v{vFl}, {FLG}")
    a(f"v_mov_b32 v{vt[0]}, 0")
    a(f"v_mov_b32 v{vt[1]}, 0")
    a(f"v_mov_b32 v{vt[2]}, 0")
    a(f"v_mov_b32 v{vt[3]}, 0")
    a(f"v_lshl_add_u32 v{vDn}, v2, 4, v{vFl}")
    a(f"ds_write_b128 v{vDn}, v[{vt[0]}:{vt[3]}]")
    a(f"ds_write_b128 v{vDn}, v[{vt[0]}:{vt[3]}] offset:1024")
    a(f"ds_write_b128 v{vDn}, v[{vt[0]}:{vt[3]}] offset:3072")
    a(f"s_lshl_b32 s{sTmp}, s{sWave}, 2")
    a(f"s_add_u32 s{sTmp}, s{sTmp}, 1024")
    a(f"v_add_u32 v{vDn}, s{sTmp}, v{vDn}")
    a("v_bfe_u32 v3, v2, 2, 2")
    a("v_and_b32 v4, 1, v2")
    a("v_lshl_add_u32 v3, v3, 1, v4")
    a("v_bfe_u32 v4, v2, 1, 1")
    a("v_lshl_add_u32 v4, v3, 4, v4")
    a("v_lshrrev_b32 v5, 4, v2")
    a("v_xor_b32 v3, v3, v5")
    a("v_lshlrev_b32 v3, 4, v3")
    a(f"v_lshl_add_u32 v{vA0}, v4, 7, v3")
    a(f"s_cmp_eq_u32 s{sC}, 0")
    for jj in range(4):
        a(f"s_mov_b32 s{sTmp}, {jj*16384}")
        a(f"s_mov_b32 s{sTmp2}, {65536+(jj&1)*16384}")
        a(f"s_cselect_b32 s{sAo[0][jj]}, s{sTmp}, s{sTmp2}")
        a(f"s_cselect_b32 s{sAo[1][jj]}, s{sTmp2}, s{sTmp}")

    def set_abase(jj):
        for e in range(2):
            a(f"v_add_u32 v{vA[jj&1][e][0]}, s{sAo[e][jj]}, v{vA0}")
            a(f"v_xor_b32 v{vA[jj&1][e][1]}, 64, v{vA[jj&1][e][0]}")

    set_abase(0)
    set_abase(1)
    a("v_bfe_u32 v3, v2, 2, 2")
    a("v_lshl_add_u32 v4, v5, 3, v3")
    a("v_lshlrev_b32 v4, 8, v4")
    a("v_and_b32 v6, 1, v5")
    a("v_lshl_add_u32 v3, v6, 2, v3")
    a(f"s_lshl_b32 s{sTmp}, s{sWave}, 1")
    a(f"v_xor_b32 v3, s{sTmp}, v3")
    a("v_lshl_add_u32 v4, v3, 5, v4")
    a("v_and_b32 v3, 3, v2")
    a("v_lshl_add_u32 v4, v3, 3, v4")
    a(f"v_add_u32 v{vB[0]}, {RING}, v4")
    a(f"v_xor_b32 v{vB[1]}, 32, v{vB[0]}")
    a("v_and_b32 v3, 15, v2")
    a(f"s_lshl_b32 s{sTmp}, s{sWave}, 5")
    a(f"v_add_u32 v3, s{sTmp}, v3")
    a("v_lshrrev_b32 v4, 2, v3")
    a("v_bfe_u32 v6, v3, 6, 1")
    a("v_xor_b32 v4, v4, v6")
    a("v_lshlrev_b32 v4, 4, v4")
    a("v_and_b32 v6, 3, v3")
    a("v_lshl_add_u32 v4, v6, 2, v4")
    a(f"v_lshl_add_u32 v{vT[0]}, v5, 14, v4")
    a(f"v_add_u32 v{vT[1]}, 64, v{vT[0]}")
    a(f"s_mov_b32 s{sMask3}, 0")
    a(f"s_mov_b32 s{sMask3+1}, 0xffff0000")
    a(f"s_mov_b32 s{sMaskLast}, 0")
    a(f"s_cmp_eq_u32 s{sTt}, {NTILE-1}")
    a(f"s_cselect_b32 s{sMaskLast+1}, s{sMask3+1}, 0")
    a(f"s_mov_b32 s{sMaskG1}, 0xffff0000")
    a(f"s_mov_b32 s{sMaskG1+1}, 0")
    a("s_waitcnt lgkmcnt(0)")
    common_late()
    a(f"s_lshl_b32 s{sSlot}, s{sGrp}, 2")
    a(f"s_add_u32 s{sSlot}, s{sSlot}, s{sWave}")
    a(f"s_lshl_b32 s{sSlot}, s{sSlot}, 14")
    a(f"s_lshl_b32 s{sTmp}, s{sTt}, 8")
    a(f"s_add_u32 s{sTmp}, s{sTmp}, s{sSlot}")
    a(f"v_lshl_add_u32 v{vSl}, v2, 2, s{sTmp}")
    sN = sAny
    a(f"s_mov_b64 s[{sN}:{sN+1}], {1 if opt.nononce else 0}")
    a(f"s_cmp_lg_u32 s{sWave}, 0")
    a("s_cbranch_scc1 L_nosent")
    a("s_cmp_lg_u32 s2, 0" if not opt.nononce else "s_cmp_eq_u32 s2, s2")
    a("s_cbranch_scc1 L_nonon")
    a(f"s_memrealtime s[{sN}:{sN+1}]")
    a("v_lshlrev_b32 v3, 6, v2")
    a("s_waitcnt lgkmcnt(0)")
    a(f"s_or_b32 s{sN}, s{sN}, 1")
    a(f"v_mov_b32 v{vt[0]}, s{sN}")
    a(f"v_mov_b32 v{vt[1]}, s{sN+1}")
    a("s_mov_b64 exec, 15")
    a(f"buffer_store_dwordx2 v[{vt[0]}:{vt[1]}], v3, s[{SDBG}:{SDBG+3}], 0 offen sc1")
    a("s_mov_b64 exec, -1")
    a.label("L_nonon")
    a.label("L_nosent")
    a(f"s_mov_b32 s{sSent}, s{sTmp}")
    a("s_barrier")
    srd(SG, 8, 512)
    srd(SB, 10, 512)
    if STAMP:
        a(f"v_mov_b32 v{vt[0]}, s94")
        a(f"v_mov_b32 v{vt[1]}, s96")
        a("s_mov_b64 exec, 1")
        a(f"buffer_store_dwordx2 v[{vt[0]}:{vt[1]}], off, s[{SWS}:{SWS+3}], s{sStB} offset:0")
        a("s_mov_b64 exec, -1")
    for i in range(4):
        a(f"s_add_u32 s{sPoll+i}, s{sSlot}, {i*4096}")
    a("v_and_b32 v3, 7, v2")
    a("v_lshlrev_b32 v3, 2, v3")
    a("v_lshrrev_b32 v4, 4, v2")
    a("v_add_u32 v3, v3, v4")
    a(f"s_lshl_b32 s{sTmp}, s{sWave}, 5")
    a(f"v_add_u32 v3, s{sTmp}, v3")
    a(f"v_lshlrev_b32 v{vPar}, 2, v3")
    a(f"v_add_u32 v{vPar}, {PAR}, v{vPar}")
    a(f"s_lshl_b32 s{sTmp}, s{sC}, 7")
    a(f"v_add_lshl_u32 v3, v3, s{sTmp}, 1")
    a(f"v_mov_b32 v{vG}, v3")
    a(f"v_lshlrev_b32 v{vPo}, 4, v2")
    a(f"v_cmp_gt_u32 vcc, 48, v2")
    a(f"v_mov_b32 v{vt[5]}, 0x7ff00000")
    a("s_nop 0")
    a(f"v_cndmask_b32 v{vPo15}, v{vt[5]}, v{vPo}, vcc")
    a(f"s_cmp_lg_u32 s{sWave}, 0")
    a(f"s_cselect_b32 s{sFlagged}, 1, 0")
    vN = 254

    def proto_start():
        lab = a.newlab("L_ps")
        a(f"s_cmp_lg_u32 s{sFlagged}, 0")
        a(f"s_cbranch_scc1 {lab}")
        a("v_lshrrev_b32 v3, 4, v2")
        a("v_lshlrev_b32 v3, 14, v3")
        a("v_and_b32 v4, 15, v2")
        a("v_lshl_add_u32 v3, v4, 4, v3")
        for r in range(4):
            a(f"v_mov_b32 v{vt[r]}, -1")
        a(f"buffer_store_dwordx4 v[{vt[0]}:{vt[3]}], v3, s[{SWS}:{SWS+3}], s{sSent} offen sc1")
        a(f"buffer_load_dwordx2 v[{vN}:{vN+1}], off, s[{SDBG}:{SDBG+3}], 0 sc1")
        a.label(lab)

    def proto_step(blocking):
        lab, top, again = a.newlab("L_pt"), a.newlab("L_ptt"), a.newlab("L_pta")
        a(f"s_cmp_lg_u32 s{sFlagged}, 0")
        a(f"s_cbranch_scc1 {lab}")
        if not blocking:
            a(f"s_getreg_b32 s{sTmp}, hwreg(HW_REG_IB_STS, 0, 4)")
            a(f"s_cmp_lg_u32 s{sTmp}, 0")
            a(f"s_cbranch_scc1 {lab}")
        else:
            a(f"s_mov_b32 s{sSpin}, 0")
        a.label(top)
        a("s_waitcnt vmcnt(0)")
        if opt.nononce:
            a(f"v_mov_b32 v{vN}, 1")
            a(f"v_mov_b32 v{vN+1}, 0")
            a("s_nop 0")
        a(f"v_readfirstlane_b32 s{sTmp}, v{vN}")
        a(f"s_cmp_eq_u32 s{sTmp}, 0")
        a(f"s_cbranch_scc1 {again}")
        a(f"v_mov_b32 v3, {NON}")
        a(f"s_lshl_b32 s{sTmp}, s{sGrp}, 6")
        a(f"s_add_u32 s{sTmp}, s{sTmp}, s{sTt}")
        a(f"s_lshl_b32 s{sTmp}, s{sTmp}, 7")
        a(f"s_add_u32 s{sTmp}, s{sTmp}, {RDY}")
        a("s_mov_b64 exec, 1")
        a(f"ds_write_b64 v3, v[{vN}:{vN+1}]")
        a(f"buffer_store_dwordx2 v[{vN}:{vN+1}], off, s[{SWS}:{SWS+3}], s{sTmp} sc1")
        a("s_mov_b64 exec, -1")
        a(f"s_mov_b32 s{sFlagged}, 1")
        a(f"s_branch {lab}")
        a.label(again)
        a(f"buffer_load_dwordx2 v[{vN}:{vN+1}], off, s[{SDBG}:{SDBG+3}], 0 sc1")
        if blocking:
            a(f"s_add_u32 s{sSpin}, s{sSpin}, 1")
            a(f"s_cmp_le_u32 s{sSpin}, {SPIN_MAX}")
            a(f"s_cbranch_scc1 {top}")
        a.label(lab)

    lds = {"n": 0, "done": -1}
    prod = {}

    def ldsop(txt, dst=None):
        if opt.nomfma and (txt.startswith("ds_read_b64_tr") or (txt.startswith("ds_read_b128") and dst != vF)):
            return
        a(txt)
        if dst is not None:
            prod[dst] = lds["n"]
        lds["n"] += 1

    def need(regs):
        idx = max(prod[r] for r in regs)
        if idx > lds["done"]:
            cnt = lds["n"] - 1 - idx
            a(f"s_waitcnt lgkmcnt({min(cnt,15)})")
            lds["done"] = idx if cnt <= 15 else lds["n"] - 1 - 15

    def a_reads(k, mb):
        j, ks2 = k // 2, k % 2
        g = (8 * k + mb) % NAG
        out = []
        for e in range(2):
            out.append((f"ds_read_b128 v[{FA[g][e]}:{FA[g][e]+3}], v{vA[j&1][e][ks2]} offset:{mb*256}", FA[g][e]))
        return out

    def b_reads(k, tap):
        u = 3 * k + tap
        out = []
        for nb in range(2):
            d = FB[k & 1][tap * 2 + nb]
            for t in range(2):
                out.append((f"ds_read_b64_tr_b16 v[{d+2*t}:{d+2*t+1}], v{vB[nb]} offset:{(u%NSLOT)*8192+t*1024}", (d, t)))
        return out

    def check_level(lvl, prefetched):
        lab, ok = a.newlab("L_lv"), a.newlab("L_lvok")
        if prefetched:
            need([vF])
            a(f"v_min3_u32 v{vF}, v{vF}, v{vF+1}, v{vF+2}")
            a(f"v_min_u32 v{vF}, v{vF}, v{vF+3}")
            a(f"v_cmp_le_u32 vcc, {lvl}, v{vF}")
            a(f"s_cbranch_vccnz {ok}")
        a(f"s_mov_b32 s{sSpin}, 0")
        a.label(lab)
        a(f"s_add_u32 s{sSpin}, s{sSpin}, 1")
        a(f"s_cmp_gt_u32 s{sSpin}, {SPIN_MAX*8}")
        a(f"s_cbranch_scc1 {ok}")
        a(f"ds_read_b128 v[{vF}:{vF+3}], v{vFl}")
        a("s_waitcnt lgkmcnt(0)")
        a(f"v_min3_u32 v{vF}, v{vF}, v{vF+1}, v{vF+2}")
        a(f"v_min_u32 v{vF}, v{vF}, v{vF+3}")
        a(f"v_cmp_le_u32 vcc, {lvl}, v{vF}")
        a(f"s_cbranch_vccz {lab}")
        a.label(ok)
        trace(f"lv{lvl}")

    def mf(d, fa, fb, zero):
        if opt.nomfma:
            return
        c = "0" if zero else f"v[{d}:{d+3}]"
        need([fa, (fb, 0), (fb, 1)])
        a(f"v_mfma_f32_16x16x32_bf16 v[{d}:{d+3}], v[{fa}:{fa+3}], v[{fb}:{fb+3}], {c}")

    def done_write(val):
        a(f"v_mov_b32 v{vt[6]}, {val}")
        ldsop(f"ds_write_b32 v{vDn}, v{vt[6]}")

    check_level(1, False)
    stamp(1, vt[0], vt[1])
    for tap in range(3):
        for r in b_reads(0, tap):
            ldsop(*r)
        if tap == 0:
            for r in a_reads(0, 0):
                ldsop(*r)
    done_write(3)
    proto_start()
    PD = opt.pd
    for g in range(1, PD):
        for r in a_reads(0, g):
            ldsop(*r)
    CHK = opt.chk
    RS = 1
    for k in range(8):
        a.c(f"---- step {k}")
        fb = FB[k & 1]
        for mb in range(8):
            g = (8 * k + mb) % NAG
            E, O = FA[g]
            z = k == 0
            seq = [(P[0] + 4 * mb, E, fb[0], z), (P[0] + 4 * mb, O, fb[2], False), (P[1] + 4 * mb, O, fb[3], z),
                   (P[1] + 4 * mb, E, fb[1], False), (Q[1] + 4 * mb, E, fb[5], z), (Q[0] + 4 * mb, E, fb[4], z)]
            side = []
            nx = 8 * k + mb + PD
            if nx < 64:
                side += [("l", r) for r in a_reads(nx // 8, nx % 8)]
            if k < 7:
                if mb == CHK - 1:
                    side.append(("l", (f"ds_read_b128 v[{vF}:{vF+3}], v{vFl}", vF)))
                if CHK <= mb < CHK + 3:
                    side += [("l", r) for r in b_reads(k + 1, mb - CHK)]
                    side.append(("d", 3 * (k + 1) + (mb - CHK) + 1))
            if mb == 0 and k in (1, 2, 3):
                proto_step(False)
            if mb == 0 and k == 4:
                proto_step(True)
            if mb == 0 and k == 6:
                a(f"buffer_load_ushort v{vBe}, v{vG}, s[{SB}:{SB+3}], 0 offen")
                a(f"buffer_load_ushort v{vG}, v{vG}, s[{SG}:{SG+3}], 0 offen")
            if mb == 0 and k in (2, 4):
                set_abase(k // 2 + 1)
            if k < 7 and mb == CHK:
                check_level(k + 2, True)
            assert CHK <= 8 - PD
            for i in range(6):
                mf(*seq[i])
                take = (len(side) + (5 - i)) // (6 - i)
                for _ in range(take):
                    kind, r = side.pop(0)
                    if kind == "l":
                        ldsop(*r)
                    else:
                        done_write(r)
    stamp(2, vt[0], vt[1])
    a("s_nop 7")
    Zr = [vt[0], vt[2]]
    for nb in range(2):
        y, x2 = vt[2 * nb], vt[2 * nb + 1]
        a(f"v_mov_b32 v{y}, v{Q[nb]}")
    a("s_nop 1")
    for nb in range(2):
        y, x2 = vt[2 * nb], vt[2 * nb + 1]
        a(f"v_permlane16_swap_b32 v{Q[nb]}, v{y}")
    a("s_nop 1")
    for nb in range(2):
        y, x2 = vt[2 * nb], vt[2 * nb + 1]
        a(f"v_mov_b32 v{x2}, v{Q[nb]}")
    a("s_nop 1")
    for nb in range(2):
        y, x2 = vt[2 * nb], vt[2 * nb + 1]
        a(f"v_permlane32_swap_b32 v{Q[nb]}, v{x2}")
    a("s_nop 1")
    for nb in range(2):
        y, x2 = vt[2 * nb], vt[2 * nb + 1]
        a(f"v_cndmask_b32 v{y}, v{y}, v{x2}, s[{sMaskG1}:{sMaskG1+1}]")
    SA = [[192, 196], [200, 204]]
    for nb in range(2):
        p, q = P[nb], Q[nb]
        for r in range(0, 30, 2):
            a(f"v_pk_add_f32 v[{p+r}:{p+r+1}], v[{p+r}:{p+r+1}], v[{q+r+2}:{q+r+3}]")
        a(f"v_add_f32 v{p+30}, v{p+30}, v{q+1}")
        a(f"v_add_f32 v{p+31}, v{p+31}, v{Zr[nb]}")
        a(f"v_cndmask_b32 v{p+31}, v{p+31}, 0, s[{sMask3}:{sMask3+1}]")
        a(f"v_cndmask_b32 v{p+29}, v{p+29}, 0, s[{sMaskLast}:{sMaskLast+1}]")
        a(f"v_cndmask_b32 v{p+27}, v{p+27}, 0, s[{sMaskLast}:{sMaskLast+1}]")
        s1, s2 = SA[nb]
        a(f"v_pk_add_f32 v[{s1}:{s1+1}], v[{p}:{p+1}], v[{p+2}:{p+3}]")
        a(f"v_pk_add_f32 v[{s1+2}:{s1+3}], v[{p+4}:{p+5}], v[{p+6}:{p+7}]")
        a(f"v_pk_mul_f32 v[{s2}:{s2+1}], v[{p}:{p+1}], v[{p}:{p+1}]")
        a(f"v_pk_mul_f32 v[{s2+2}:{s2+3}], v[{p+2}:{p+3}], v[{p+2}:{p+3}]")
        for r in range(4, 32, 2):
            o = 2 * ((r >> 1) & 1)
            x = f"v[{p+r}:{p+r+1}]"
            a(f"v_pk_fma_f32 v[{s2+o}:{s2+o+1}], {x}, {x}, v[{s2+o}:{s2+o+1}]")
            if r >= 8:
                a(f"v_pk_add_f32 v[{s1+o}:{s1+o+1}], v[{s1+o}:{s1+o+1}], {x}")
    for nb in range(2):
        for st in range(2):
            s = SA[nb][st]
            a(f"v_pk_add_f32 v[{s}:{s+1}], v[{s}:{s+1}], v[{s+2}:{s+3}]")
    for nb in range(2):
        for st in range(2):
            s = SA[nb][st]
            a(f"v_add_f32 v{s}, v{s}, v{s+1}")

    def reduce4(v0_, v1_, v2_, v3_):
        a("s_nop 1")
        a(f"v_permlane16_swap_b32 v{v0_}, v{v1_}")
        a(f"v_permlane16_swap_b32 v{v2_}, v{v3_}")
        a("s_nop 1")
        a(f"v_add_f32 v{v0_}, v{v0_}, v{v1_}")
        a(f"v_add_f32 v{v2_}, v{v2_}, v{v3_}")
        a("s_nop 1")
        a(f"v_permlane32_swap_b32 v{v0_}, v{v2_}")
        a("s_nop 1")
        a(f"v_add_f32 v{v0_}, v{v0_}, v{v2_}")

    reduce4(SA[0][0], SA[1][0], SA[0][1], SA[1][1])
    S1 = SA[0][0]
    a(f"v_cmp_eq_u32 vcc, -1, v{S1}")
    a(f"v_mov_b32 v{S1+1}, 0x7fc00000")
    a("s_nop 0")
    a(f"v_cndmask_b32 v{S1}, v{S1}, v{S1+1}, vcc")
    a(f"buffer_store_dword v{S1}, v{vSl}, s[{SWS}:{SWS+3}], 0 offen sc1")
    stamp(3, vt[0], vt[1])
    trace("pub")
    trace_dump(1)
    a("s_barrier")
    PL = [128 + 4 * m for m in range(16)]

    def poll_load(m):
        vo = vPo15 if m == 15 else vPo
        return f"buffer_load_dwordx4 v[{PL[m]}:{PL[m]+3}], v{vo}, s[{SWS}:{SWS+3}], s{sPoll+(m>>2)} offen offset:{(m&3)*1024} sc1"

    def t_writes():
        for nb in range(2):
            for r in range(0, 32, 2):
                o0 = (r >> 1) * 2
                a(f"ds_write2st64_b32 v{vT[nb]}, v{P[nb]+r}, v{P[nb]+r+1} offset0:{o0} offset1:{o0+32}")

    if opt.pollfirst:
        for m in range(16):
            a(poll_load(m))
        t_writes()
    else:
        t_writes()
        for m in range(16):
            a(poll_load(m))
    tread_setup()
    a("s_waitcnt lgkmcnt(0)")
    a("s_barrier")
    tread_issue()
    PM = [4 + 2 * i for i in range(12)] + [40 + 2 * i for i in range(4)]
    a(f"s_mov_b32 s{sSpin}, 0")
    a("s_waitcnt vmcnt(0)")
    for m in range(16):
        a(f"v_max3_u32 v{vt[m&3]}, v{PL[m]}, v{PL[m]+1}, v{PL[m]+2}")
        a(f"v_max_u32 v{vt[m&3]}, v{vt[m&3]}, v{PL[m]+3}")
        a(f"v_cmp_eq_u32 s[{PM[m]}:{PM[m]+1}], -1, v{vt[m&3]}")
    a.label("L_poll")
    a(f"s_or_b64 s[{sAny}:{sAny+1}], s[{PM[0]}:{PM[0]+1}], s[{PM[1]}:{PM[1]+1}]")
    for m in range(2, 16):
        a(f"s_or_b64 s[{sAny}:{sAny+1}], s[{sAny}:{sAny+1}], s[{PM[m]}:{PM[m]+1}]")
    a("s_cbranch_scc0 L_pdone")
    a(f"s_add_u32 s{sSpin}, s{sSpin}, 1")
    a(f"s_cmp_gt_u32 s{sSpin}, {SPIN_MAX}")
    a("s_cbranch_scc1 L_pdone")
    for m in range(16):
        lab = a.newlab("L_pl")
        a(f"s_mov_b64 exec, s[{PM[m]}:{PM[m]+1}]")
        a(f"s_cbranch_execz {lab}")
        a(poll_load(m))
        a.label(lab)
    a("s_waitcnt vmcnt(0)")
    for m in range(16):
        lab = a.newlab("L_pc")
        a(f"s_mov_b64 exec, s[{PM[m]}:{PM[m]+1}]")
        a(f"s_cbranch_execz {lab}")
        a(f"v_max3_u32 v{vt[0]}, v{PL[m]}, v{PL[m]+1}, v{PL[m]+2}")
        a(f"v_max_u32 v{vt[0]}, v{vt[0]}, v{PL[m]+3}")
        a(f"v_cmp_eq_u32 s[{PM[m]}:{PM[m]+1}], -1, v{vt[0]}")
        a.label(lab)
    a("s_mov_b64 exec, -1")
    a("s_branch L_poll")
    a.label("L_pdone")
    a("s_mov_b64 exec, -1")
    stamp(4, vt[0], vt[1])
    step = 1
    while step < 16:
        for m in range(0, 16, 2 * step):
            for hh in range(2):
                d, s_ = PL[m] + 2 * hh, PL[m + step] + 2 * hh
                a(f"v_pk_add_f32 v[{d}:{d+1}], v[{d}:{d+1}], v[{s_}:{s_+1}]")
        step *= 2
    v0_, v1_, v2_, v3_ = PL[0], PL[0] + 1, PL[0] + 2, PL[0] + 3
    reduce4(v0_, v1_, v2_, v3_)
    a("s_nop 1")
    a(f"v_mov_b32_dpp v{v1_}, v{v0_} row_ror:8 row_mask:0xf bank_mask:0xf")
    c1 = -2.0 * math.sqrt(2.0 / math.pi) * math.log2(math.e)
    c2 = c1 * 0.044715
    sc = -((-c2) ** (1.0 / 3.0))
    a(f"v_mul_f32 v{v0_}, {hex(f2u(1.0/L_OUT))}, v{v0_}")
    a(f"v_mul_f32 v{v1_}, {hex(f2u(1.0/L_OUT))}, v{v1_}")
    a(f"v_fma_f32 v{v1_}, -v{v0_}, v{v0_}, v{v1_}")
    a(f"v_max_f32 v{v1_}, 0, v{v1_}")
    a(f"v_add_f32 v{v1_}, {hex(f2u(1e-5))}, v{v1_}")
    a(f"v_rsq_f32 v{v1_}, v{v1_}")
    a(f"v_lshlrev_b32 v{vG}, 16, v{vG}")
    a(f"v_lshlrev_b32 v{vBe}, 16, v{vBe}")
    a(f"v_mul_f32 v{vG}, {hex(f2u(sc))}, v{vG}")
    a(f"v_mul_f32 v{vBe}, {hex(f2u(sc))}, v{vBe}")
    a(f"v_mul_f32 v{v1_}, v{v1_}, v{vG}")
    a(f"v_fma_f32 v{v0_}, -v{v0_}, v{v1_}, v{vBe}")
    a(f"s_mov_b32 s{sTmp}, 0x00ff00ff")
    a(f"s_mov_b32 exec_lo, s{sTmp}")
    a(f"s_mov_b32 exec_hi, s{sTmp}")
    a(f"ds_write2_b32 v{vPar}, v{v1_}, v{v0_} offset0:0 offset1:128")
    a("s_mov_b64 exec, -1")
    a("s_waitcnt lgkmcnt(0)")
    a("s_barrier")

    a.label("L_epi")
    SCL, SHF = 16, 24
    a(f"ds_read_b128 v[{SCL}:{SCL+3}], v10")
    a(f"ds_read_b128 v[{SCL+4}:{SCL+7}], v10 offset:16")
    a(f"ds_read_b128 v[{SHF}:{SHF+3}], v10 offset:512")
    a(f"ds_read_b128 v[{SHF+4}:{SHF+7}], v10 offset:528")
    k1 = c1 / sc
    a(f"s_mov_b32 s{sK}, {hex(f2u(k1))}")
    a(f"s_mov_b32 s{sK+1}, {hex(f2u(k1))}")
    a(f"s_mov_b32 s{sK+2}, {hex(f2u(sc))}")
    a(f"s_mov_b32 s{sK+3}, {hex(f2u(sc))}")
    a("s_waitcnt lgkmcnt(0)")
    W_, O_ = 32, 48
    for i in range(4):
        h = H[i]
        w_ = W_ + 8 * (i & 1)
        o_ = O_ + 4 * (i & 1)
        for p in range(4):
            a(f"v_pk_fma_f32 v[{h+2*p}:{h+2*p+1}], v[{h+2*p}:{h+2*p+1}], v[{SCL+2*p}:{SCL+2*p+1}], v[{SHF+2*p}:{SHF+2*p+1}]")
        for p in range(4):
            a(f"v_pk_fma_f32 v[{w_+2*p}:{w_+2*p+1}], v[{h+2*p}:{h+2*p+1}], v[{h+2*p}:{h+2*p+1}], s[{sK}:{sK+1}]")
        for p in range(4):
            a(f"v_pk_mul_f32 v[{w_+2*p}:{w_+2*p+1}], v[{w_+2*p}:{w_+2*p+1}], v[{h+2*p}:{h+2*p+1}]")
        for e in range(8):
            a(f"v_exp_f32 v{w_+e}, v{w_+e}")
        for p in range(4):
            a(f"v_pk_fma_f32 v[{w_+2*p}:{w_+2*p+1}], v[{w_+2*p}:{w_+2*p+1}], s[{sK+2}:{sK+3}], s[{sK+2}:{sK+3}]")
        for e in range(8):
            a(f"v_rcp_f32 v{w_+e}, v{w_+e}")
        for p in range(4):
            a(f"v_pk_mul_f32 v[{w_+2*p}:{w_+2*p+1}], v[{w_+2*p}:{w_+2*p+1}], v[{h+2*p}:{h+2*p+1}]")
        for p in range(4):
            a(f"v_cvt_pk_bf16_f32 v{o_+p}, v{w_+2*p}, v{w_+2*p+1}")
        vo = 9 if i == 3 else 8
        a(f"buffer_store_dwordx4 v[{o_}:{o_+3}], v{vo}, s[{SO}:{SO+3}], s{sOutB+i} offen{ONT}")
    if STAMP:
        a("v_cmp_gt_u32 vcc, 64, v0")
        a("s_cbranch_vccz L_end")
        stamp(5, 232, 233)
        a("s_waitcnt vmcnt(0)")
        stamp(6, 232, 233)
    a.label("L_end")
    a("s_endpgm")
    a.label("L_codeend")

    hdr = open("cdna_kernels/%s.s.ref" % NAME).read().split("\n")
    head = []
    for ln in hdr:
        if ln.startswith("; @launch"):
            head.append("; @launch grid=(254,1,1) block=(512,1,1) lds=163840")
            break
        head.append(ln)
    out = "\n".join(head) + "\n"
    out += f""".amdgcn_target "amdgcn-amd-amdhsa--gfx950"
.text
.globl {NAME}_kernel
.p2align 8
.type {NAME}_kernel,@function
{NAME}_kernel:
"""
    out += a.text()
    out += f""".section .rodata,"a"
.p2align 6
.amdhsa_kernel {NAME}_kernel
  .amdhsa_next_free_vgpr 256
  .amdhsa_next_free_sgpr 102
  .amdhsa_accum_offset 256
  .amdhsa_group_segment_fixed_size 0
  .amdhsa_kernarg_size 56
  .amdhsa_user_sgpr_count 2
  .amdhsa_user_sgpr_kernarg_segment_ptr 1
  .amdhsa_system_sgpr_workgroup_id_x 1
.end_amdhsa_kernel
"""
    return out


def parse(argv=None):
    ap = argparse.ArgumentParser()
    ap.add_argument("-o", default="cdna_kernels/%s.s" % NAME)
    ap.add_argument("--stamp", type=int, default=0)
    ap.add_argument("--skipdma", type=int, default=0)
    ap.add_argument("--sleep", type=int, default=1)
    ap.add_argument("--nomfma", type=int, default=0)
    ap.add_argument("--rot", type=int, default=1)
    ap.add_argument("--freerun", type=int, default=0)
    ap.add_argument("--trace", type=int, default=0)
    ap.add_argument("--nononce", type=int, default=0)
    ap.add_argument("--xpol", default="nt,nt")
    ap.add_argument("--xnt", type=int, default=1)
    ap.add_argument("--wpf", type=int, default=1)
    ap.add_argument("--wpf_pos", type=int, default=0)
    ap.add_argument("--cpf", type=int, default=10)
    ap.add_argument("--ostore", default="nt")
    ap.add_argument("--order", default="H0 W0 L0 P H1+W1 H2+W2 L1 H3+W3 L2 W4 W5 L3 W6 W7")
    ap.add_argument("--depth", type=int, default=6)
    ap.add_argument("--throttle", type=int, default=0)
    ap.add_argument("--pd", type=int, default=3)
    ap.add_argument("--chk", type=int, default=2)
    ap.add_argument("--pollfirst", type=int, default=1)
    o = ap.parse_args(argv)
    if o.ostore:
        o.ostore = " " + o.ostore.replace("+", " ")
    return o


if __name__ == "__main__":
    o = parse()
    open(o.o, "w").write(gen(o))
```

```python
import sys, math, struct, argparse

NAME = "standalone__self_sup_conv_stem_wavlm__speech"
L_OUT = 7999
TR = 127
NTILE = 63
XB_BATCH = 16000 * 512
X_BYTES = 2 * XB_BATCH
W_BYTES = 3 * 256 * 256 * 2
OUT_BYTES = 2 * L_OUT * 512
FLG = 163840
PAR = 65536
RDY = 0x40000
SPIN_MAX = 200000


def f2u(f):
    return struct.unpack("<I", struct.pack("<f", f))[0]


class Asm:
    def __init__(self):
        self.lines = []
        self.lab = 0

    def __call__(self, s):
        self.lines.append("    " + s)

    def label(self, n):
        self.lines.append(n + ":")

    def newlab(self, p="L"):
        self.lab += 1
        return f"{p}_{self.lab}"

    def c(self, s):
        self.lines.append("    ; " + s)

    def text(self):
        return "\n".join(self.lines) + "\n"


def xslot(kind, j):
    return 2 * (j % 3) + (0 if kind == "E" else 1)


def build_stream(spec):
    def X(which, j):
        return [("x", which, j, qq) for qq in range(4)]

    def Wu(u):
        return [("w", u, 0), ("w", u, 1)]

    def one(t):
        if t == "P":
            return [("pf",)]
        if t == "F":
            return [("fl",)]
        n = int(t[1:])
        if t[0] == "H":
            return X(0, n)
        if t[0] == "L":
            return X(1, n)
        if t[0] == "W":
            return Wu(3 * n) + Wu(3 * n + 1) + Wu(3 * n + 2)
        if t[0] == "U":
            return Wu(n)
        raise ValueError(t)

    def mix(a, b):
        out = []
        ia = ib = 0
        while ia < len(a) or ib < len(b):
            if ib >= len(b) or (ia < len(a) and ia * len(b) <= ib * len(a)):
                out.append(a[ia]); ia += 1
            else:
                out.append(b[ib]); ib += 1
        return out

    S = []
    for tok in spec.split():
        parts = [sum((one(t) for t in p.split(",")), []) for p in tok.split("+")]
        cur = parts[0]
        for p in parts[1:]:
            cur = mix(cur, p)
        S += cur
    assert len([t for t in S if t[0] not in ("pf", "fl")]) == 80 and len(set(S)) == len(S), (len(S), spec)
    return S


def gen(opt):
    a = Asm()
    STAMP = opt.stamp
    XPOL = [(" " + p.replace("+", " ")) if p != "-" else "" for p in opt.xpol.split(",")]
    ONT = opt.ostore
    D = opt.depth
    NOWN = opt.nown
    PART = NOWN * 16384
    RING = PART + 32768
    NSLOT = (FLG - RING) // 8192

    SX, SW, SO, SWS, SDBG, SG, SB = 20, 24, 28, 32, 36, 40, 44
    sT, sC, sBt, sTt, sGrp, sWave, sTmp, sTmp2 = 48, 49, 50, 51, 52, 53, 54, 55
    sXb0, sXb1, sXl0, sXl1, sWb, sWl, sOff = 56, 57, 58, 59, 60, 61, 62
    sLvl = 63
    sMask3, sMaskLast, sMaskG1 = 64, 66, 68
    sSlot = 70
    sPoll = 71
    sOutB = 75
    sNv = 79
    sK = 80
    sSt = 84
    sStB = 86
    sSpin = 87
    sEx = 88
    sPc = 90
    sAny = 92
    sPub = 93
    sSent, sFlagged = 90, 91
    sPM = 4

    def srd(d, p, nbytes):
        a(f"s_mov_b32 s{d}, s{p}")
        a(f"s_and_b32 s{d+1}, s{p+1}, 0xffff")
        a(f"s_mov_b32 s{d+2}, {nbytes}")
        a(f"s_mov_b32 s{d+3}, 0x20000")

    def stamp(idx, vt0=None, vt1=None):
        if not STAMP:
            return
        a(f"s_memrealtime s[{sSt}:{sSt+1}]")
        a("s_memtime s[98:99]")
        a("s_waitcnt lgkmcnt(0)")
        a(f"v_writelane_b32 v63, s{sSt}, {2*idx}")
        a(f"v_writelane_b32 v63, s98, {2*idx+1}")

    def stamp_dump(mask):
        a(f"s_mov_b64 exec, {mask}")
        a("v_lshlrev_b32 v60, 2, v2")
        a(f"buffer_store_dword v63, v60, s[{SWS}:{SWS+3}], s{sStB} offen")
        a("s_mov_b64 exec, -1")

    trc = {"n": 0, "names": []}

    def trace(name):
        if not opt.trace:
            return
        if trc["n"] >= 128:
            return
        a("s_memtime s[100:101]")
        a("s_waitcnt lgkmcnt(0)")
        a(f"v_writelane_b32 v{62 if trc['n'] < 64 else 61}, s100, {trc['n'] % 64}")
        trc["names"].append(name)
        trc["n"] += 1

    def trace_dump(half):
        if not opt.trace:
            return
        lab = a.newlab("L_td")
        a(f"s_cmp_lg_u32 s{sWave}, 0")
        a(f"s_cbranch_scc1 {lab}")
        a(f"s_lshl_b32 s{sTmp}, s2, 10")
        a(f"s_add_u32 s{sTmp}, s{sTmp}, {0x180000 + half*512}")
        a("v_lshlrev_b32 v63, 2, v2")
        a(f"buffer_store_dword v62, v63, s[{SWS}:{SWS+3}], s{sTmp} offen")
        a(f"buffer_store_dword v61, v63, s[{SWS}:{SWS+3}], s{sTmp} offen offset:256")
        a.label(lab)
        sys.stderr.write(f"TRACE{half}: " + ",".join(trc["names"]) + "\n")
        trc["n"] = 0
        trc["names"] = []

    if STAMP:
        a("s_memrealtime s[94:95]")
        a("s_memtime s[96:97]")
    a("s_load_dwordx8 s[4:11], s[0:1], 0")
    a("s_load_dwordx4 s[12:15], s[0:1], 32")
    a("s_load_dwordx2 s[16:17], s[0:1], 48")
    a(f"s_lshr_b32 s{sTmp}, s2, 4")
    a(f"s_lshl_b32 s{sTmp}, s{sTmp}, 3")
    a(f"s_and_b32 s{sTmp2}, s2, 7")
    a(f"s_add_u32 s{sT}, s{sTmp}, s{sTmp2}")
    a(f"s_cmp_ge_u32 s{sT}, {2*NTILE}")
    a("s_cbranch_scc1 L_end")
    a("v_lshrrev_b32 v1, 6, v0")
    a("v_and_b32 v2, 63, v0")
    a(f"v_readfirstlane_b32 s{sWave}, v1")
    a(f"s_bfe_u32 s{sC}, s2, 0x10003")
    a(f"s_cmp_ge_u32 s{sT}, {NTILE}")
    a(f"s_cselect_b32 s{sBt}, 1, 0")
    a(f"s_mul_i32 s{sTmp}, s{sBt}, {NTILE}")
    a(f"s_sub_u32 s{sTt}, s{sT}, s{sTmp}")
    a(f"s_cmp_lt_u32 s{sWave}, 4")
    a("s_cbranch_scc1 L_compute")

    def common_late():
        a(f"s_lshl_b32 s{sGrp}, s{sBt}, 1")
        a(f"s_add_u32 s{sGrp}, s{sGrp}, s{sC}")
        a(f"s_cmp_eq_u32 s{sTt}, {NTILE-1}")
        a(f"s_cselect_b32 s{sNv}, {TR - (L_OUT - TR*(NTILE-1))}, 0")
        a(f"s_sub_u32 s{sNv}, {TR}, s{sNv}")
        a(f"s_lshl_b32 s{sStB}, s2, 8")
        a(f"s_add_u32 s{sStB}, s{sStB}, 0x100000")
        srd(SO, 12, OUT_BYTES)
        srd(SWS, 16, 0x200000 if STAMP else 0x48000)
        srd(SDBG, 14, 256)
        a(f"s_mul_i32 s{sTmp}, s{sBt}, {L_OUT}")
        a(f"s_mul_i32 s{sTmp2}, s{sTt}, {TR}")
        a(f"s_add_u32 s{sTmp}, s{sTmp}, s{sTmp2}")
        a(f"s_lshl_b32 s{sOutB}, s{sTmp}, 9")
        for i in range(1, 4):
            a(f"s_add_u32 s{sOutB+i}, s{sOutB}, {i*16384}")

    a(f"s_sub_u32 s{sWave}, s{sWave}, 4")
    if opt.lprio:
        a(f"s_setprio {opt.lprio}")
    a("v_lshrrev_b32 v5, 3, v2")
    a("v_lshlrev_b32 v5, 10, v5")
    a(f"s_lshl_b32 s{sTmp}, s{sWave}, 1")
    a("v_and_b32 v6, 7, v2")
    a(f"v_xor_b32 v6, s{sTmp}, v6")
    a("v_lshl_add_u32 v3, v6, 4, v5")
    a("v_xor_b32 v4, 16, v3")
    a("v_lshrrev_b32 v6, 4, v2")
    a(f"s_lshr_b32 s{sTmp}, s{sWave}, 1")
    a(f"s_lshl_b32 s{sTmp}, s{sTmp}, 2")
    a(f"v_or_b32 v7, s{sTmp}, v6")
    a("v_bfe_u32 v8, v2, 1, 3")
    a("v_xor_b32 v7, v7, v8")
    a("v_lshlrev_b32 v5, 9, v6")
    a("v_lshl_add_u32 v5, v7, 5, v5")
    a("v_and_b32 v7, 1, v2")
    a("v_lshl_add_u32 v5, v7, 4, v5")
    a(f"s_bfe_u32 s{sTmp}, s2, 0x50003")
    a(f"s_lshl_b32 s{sTmp}, s{sTmp}, 2")
    a(f"s_add_u32 s{sTmp}, s{sTmp}, s{sWave}")
    a(f"s_mul_i32 s{sTmp}, s{sTmp}, 3072")
    a("v_min_u32 v6, 47, v2")
    a(f"v_lshl_add_u32 v6, v6, 6, s{sTmp}")
    a(f"s_mul_i32 s{sXb0}, s{sBt}, {XB_BATCH}")
    a(f"s_mul_i32 s{sTmp}, s{sTt}, {TR*1024}")
    a(f"s_add_u32 s{sXb0}, s{sXb0}, s{sTmp}")
    a(f"s_lshl_b32 s{sTmp}, s{sWave}, 15")
    a(f"s_add_u32 s{sXb0}, s{sXb0}, s{sTmp}")
    a(f"s_lshl_b32 s{sTmp}, s{sC}, 9")
    a(f"s_xor_b32 s{sTmp2}, s{sTmp}, 512")
    a(f"s_add_u32 s{sXb1}, s{sXb0}, s{sTmp2}")
    a(f"s_add_u32 s{sXb0}, s{sXb0}, s{sTmp}")
    a(f"s_lshl_b32 s{sXl0}, s{sWave}, 12")
    a(f"s_add_u32 s{sXl1}, s{sXl0}, {PART}")
    a(f"s_lshl_b32 s{sWb}, s{sWave}, 11")
    a(f"s_lshl_b32 s{sTmp}, s{sC}, 8")
    a(f"s_add_u32 s{sWb}, s{sWb}, s{sTmp}")
    a(f"s_lshl_b32 s{sWl}, s{sWave}, 10")
    a(f"s_add_u32 s{sWl}, s{sWl}, {RING}")
    RX0, RX1, RW = [64, 65, 66, 67], [71, 72, 73, 74], [80, 81, 82, 83]
    for j in range(4):
        if opt.rot:
            a(f"s_lshr_b32 s{sTmp}, s2, 4")
            a(f"s_add_u32 s{sTmp}, s{sTmp}, {j}")
            a(f"s_and_b32 s{sTmp}, s{sTmp}, 3")
        else:
            a(f"s_mov_b32 s{sTmp}, {j}")
        a(f"s_lshl_b32 s{sTmp2}, s{sTmp}, 7")
        a(f"s_add_u32 s{RX0[j]}, s{sXb0}, s{sTmp2}")
        a(f"s_add_u32 s{RX1[j]}, s{sXb1}, s{sTmp2}")
        a(f"s_lshl_b32 s{sTmp2}, s{sTmp}, 15")
        a(f"s_add_u32 s{RW[j]}, s{sWb}, s{sTmp2}")
    a("s_waitcnt lgkmcnt(0)")
    srd(SX, 4, X_BYTES)
    srd(SW, 6, W_BYTES)
    trace("start")

    specs = opt.order.split("/")
    ncls = len(specs)
    if ncls > 1:
        a(f"s_and_b32 s{sTmp}, s{sT}, {ncls//2 - 1}")
        a(f"s_lshl_b32 s{sTmp}, s{sTmp}, 1")
        a(f"s_add_u32 s{sTmp}, s{sTmp}, s{sC}")
        for ci in range(1, ncls):
            a(f"s_cmp_eq_u32 s{sTmp}, {ci}")
            a(f"s_cbranch_scc1 L_cls{ci}")

    def lproto(cnt, blocking):
        lab, top, again = a.newlab("L_pt"), a.newlab("L_ptt"), a.newlab("L_pta")
        a(f"s_cmp_lg_u32 s{sFlagged}, 0")
        a(f"s_cbranch_scc1 {lab}")
        if blocking:
            a(f"s_mov_b32 s{sSpin}, 0")
        a.label(top)
        a(f"s_waitcnt vmcnt({cnt})")
        a(f"v_readfirstlane_b32 s{sTmp}, v26")
        a(f"s_cmp_eq_u32 s{sTmp}, 0")
        a(f"s_cbranch_scc1 {again}")
        a(f"s_lshl_b32 s{sTmp}, s{sGrp}, 6")
        a(f"s_add_u32 s{sTmp}, s{sTmp}, s{sTt}")
        a(f"s_lshl_b32 s{sTmp}, s{sTmp}, 7")
        a(f"s_add_u32 s{sTmp}, s{sTmp}, {RDY}")
        a("s_mov_b64 exec, 1")
        a(f"buffer_store_dwordx2 v[26:27], off, s[{SWS}:{SWS+3}], s{sTmp} sc1")
        a("s_mov_b64 exec, -1")
        a(f"s_mov_b32 s{sFlagged}, 1")
        a(f"s_branch {lab}")
        a.label(again)
        a(f"buffer_load_dwordx2 v[26:27], off, s[{SDBG}:{SDBG+3}], 0 sc1")
        if blocking:
            a(f"s_add_u32 s{sSpin}, s{sSpin}, 1")
            a(f"s_cmp_le_u32 s{sSpin}, {SPIN_MAX}")
            a(f"s_cbranch_scc1 {top}")
        a.label(lab)

    def emit_loader(spec):
        stream = build_stream(spec)
        if opt.skipdma:
            stream = [it for i, it in enumerate(stream) if i < 16 or not (
                opt.skipdma == 3 or (opt.skipdma == 1 and it[0] == "x") or (opt.skipdma == 2 and it[0] == "w"))]

        def earliest(it):
            if opt.freerun:
                return -2
            if it[0] == "w" and it[1] >= NSLOT:
                return (it[1] - NSLOT) // 3
            if it[0] == "x":
                ns = NOWN if it[1] == 0 else 2
                if it[2] >= ns:
                    return 2 * (it[2] - ns) + 2
            return -2

        def req(k):
            r = [("w", u, h) for u in range(3 * k, 3 * k + 3) for h in range(2)]
            r += [("x", wh, k // 2, qq) for wh in range(2) for qq in range(4)]
            return [it for it in r if it in stream]

        caps = [int(v) for v in opt.caps.split(",")]
        issued = []
        pos = 0

        def issue(it):
            i = len(issued)
            if it[0] == "x":
                _, wh, j, qq = it
                sb, sl = (RX0[j], sXl0) if wh == 0 else (RX1[j], sXl1)
                a(f"s_add_u32 m0, s{sl}, {((j % NOWN) if wh == 0 else (j & 1))*16384+qq*1024}")
                a(f"s_add_u32 s{sOff}, s{sb}, {qq*8192}")
                a(f"buffer_load_dwordx4 v{3+(qq>>1)}, s[{SX}:{SX+3}], s{sOff} offen{XPOL[wh]} lds")
            elif it[0] == "w":
                _, u, h = it
                k, tap = u // 3, u % 3
                a(f"s_add_u32 m0, s{sWl}, {(u%NSLOT)*8192+h*4096}")
                a(f"s_add_u32 s{sOff}, s{RW[k//2]}, {(tap*256+32*(k%2)+16*h)*512}")
                a(f"buffer_load_dwordx4 v5, s[{SW}:{SW+3}], s{sOff} offen lds")
            else:
                a(f"buffer_load_dword v8, v6, s[{SW}:{SW+3}], 0 offen")
            issued.append(it)

        for iv in range(-2, 7):
            nxt_req = req(iv + 2)
            cap = caps[min(iv + 2, len(caps) - 1)]
            cnt = 0
            if iv >= 0 and opt.ldelay:
                a(f"s_sleep {opt.ldelay}")
            while pos < len(stream) and earliest(stream[pos]) <= iv and (cnt < cap or any(r not in issued for r in nxt_req)):
                issue(stream[pos])
                pos += 1
                cnt += 1
                if iv == -2 and cnt == 14:
                    common_late()
            if iv == -1:
                lab = a.newlab("L_sn")
                a(f"s_cmp_lg_u32 s{sWave}, 3")
                a(f"s_cselect_b32 s{sFlagged}, 1, 0")
                a(f"s_cbranch_scc1 {lab}")
                a(f"s_lshl_b32 s{sTmp}, s{sGrp}, 16")
                a(f"s_lshl_b32 s{sTmp2}, s{sTt}, 8")
                a(f"s_add_u32 s{sTmp}, s{sTmp}, s{sTmp2}")
                a("v_lshrrev_b32 v24, 4, v2")
                a("v_lshlrev_b32 v24, 14, v24")
                a("v_and_b32 v25, 15, v2")
                a("v_lshl_add_u32 v24, v25, 4, v24")
                for r in range(28, 32):
                    a(f"v_mov_b32 v{r}, -1")
                a(f"buffer_store_dwordx4 v[28:31], v24, s[{SWS}:{SWS+3}], s{sTmp} offen sc1")
                a(f"buffer_load_dwordx2 v[26:27], off, s[{SDBG}:{SDBG+3}], 0 sc1")
                a.label(lab)
                a("v_min_u32 v18, 62, v2")
                a(f"s_lshl_b32 s{sTmp}, s{sGrp}, 13")
                a(f"s_add_u32 s{sTmp}, s{sTmp}, {RDY}")
                a(f"v_lshl_add_u32 v18, v18, 7, s{sTmp}")
            if iv in (0, 1, 2):
                lproto(cnt, False)
            if iv == 3:
                lproto(0, True) if False else lproto(cnt, False)
            if iv == 6:
                break
            for r in nxt_req:
                assert r in issued, (iv, r)
            if nxt_req:
                last = max(issued.index(r) for r in nxt_req)
                a(f"s_waitcnt vmcnt({min(63, len(issued) - 1 - last)})")
            a("s_barrier")
        assert pos == len(stream), (pos, len(stream))

    for ci, spec in enumerate(specs):
        a.label(f"L_cls{ci}")
        emit_loader(spec)
        if ci + 1 < ncls:
            a("s_branch L_ldone")
    a.label("L_ldone")
    if STAMP:
        stamp(7)
        stamp_dump("0xc000")
    a(f"s_cmp_lg_u32 s{sWave}, 3")
    a("s_cbranch_scc1 L_cnt_ok")
    lproto(0, True)
    a(f"s_mov_b32 s{sSpin}, 0")
    a.label("L_cnt")
    a(f"buffer_load_dwordx2 v[16:17], v18, s[{SWS}:{SWS+3}], 0 offen sc1")
    a("s_waitcnt vmcnt(0)")
    a("v_cmp_ne_u64 vcc, v[16:17], v[26:27]")
    a("s_cbranch_vccz L_cnt_ok")
    a(f"s_add_u32 s{sSpin}, s{sSpin}, 1")
    a(f"s_cmp_gt_u32 s{sSpin}, {SPIN_MAX}")
    a("s_cbranch_scc1 L_cnt_ok")
    a("s_sleep 4")
    a("s_branch L_cnt")
    a.label("L_cnt_ok")
    H = [64 + 8 * i for i in range(4)]

    def tread_setup():
        a("v_and_b32 v3, 15, v0")
        a("v_lshrrev_b32 v4, 4, v0")
        a("v_lshlrev_b32 v5, 1, v3")
        a("v_lshrrev_b32 v6, 3, v3")
        a("v_xor_b32 v5, v5, v6")
        a("v_lshlrev_b32 v5, 4, v5")
        a("v_lshl_add_u32 v5, v4, 9, v5")
        a("v_xor_b32 v6, 16, v5")
        a(f"s_lshl_b32 s{sTmp}, s{sC}, 8")
        a(f"v_lshl_add_u32 v8, v4, 9, s{sTmp}")
        a("v_lshl_add_u32 v8, v3, 4, v8")
        a("v_add_u32 v4, 96, v4")
        a(f"v_cmp_gt_u32 vcc, s{sNv}, v4")
        a("v_mov_b32 v9, 0x7ff00000")
        a("v_lshlrev_b32 v10, 5, v3")
        a("v_cndmask_b32 v9, v9, v8, vcc")
        a(f"v_add_u32 v10, {PAR}, v10")

    def tread_issue():
        for i in range(4):
            a(f"ds_read_b128 v[{H[i]}:{H[i]+3}], v5 offset:{i*16384}")
            a(f"ds_read_b128 v[{H[i]+4}:{H[i]+7}], v6 offset:{i*16384}")

    a("s_waitcnt lgkmcnt(0)")
    tread_setup()
    a("s_barrier")
    a("s_barrier")
    tread_issue()
    a("s_barrier")
    a("s_branch L_epi")

    a.label("L_compute")
    if opt.prio:
        a(f"s_setprio {opt.prio}")
    P = [64, 96]
    Q = [128, 160]
    FB = [[192 + 24 * s + 4 * i for i in range(6)] for s in range(2)]
    NAG = 4
    FA = [[8 + 8 * g, 12 + 8 * g] for g in range(NAG)]
    vA = [[[40, 41], [42, 43]], [[248, 249], [250, 251]]]
    vA0 = 252
    sAo = [[56, 57, 58, 59], [60, 61, 62, 63]]
    vB = [44, 45]
    vSl, vG, vBe = 46, 47, 48
    vT = [49, 50]
    vFl, vDn, vPar = 51, 52, 53
    vPo, vPo15 = 54, 55
    vF = 56
    vt = [240 + i for i in range(8)]

    def code_prefetch():
        lab = a.newlab("L_ncp")
        a(f"s_cmp_lg_u32 s{sWave}, 3")
        a(f"s_cbranch_scc1 {lab}")
        a(f"s_getpc_b64 s[{sPc}:{sPc+1}]")
        a.label("L_pcref")
        a(f"s_sub_u32 s{sPc}, s{sPc}, L_pcref-{NAME}_kernel")
        a(f"s_subb_u32 s{sPc+1}, s{sPc+1}, 0")
        a(f"s_bfe_u32 s{sTmp}, s2, 0x50003")
        a(f"s_mul_i32 s{sTmp}, s{sTmp}, {opt.cpf*64}")
        a(f"v_min_u32 v3, {opt.cpf-1}, v2")
        a(f"v_lshl_add_u32 v3, v3, 6, s{sTmp}")
        a(f"v_min_u32 v3, L_codeend-{NAME}_kernel-4, v3")
        a(f"global_load_dword v61, v3, s[{sPc}:{sPc+1}]")
        a.label(lab)

    if opt.cpf:
        code_prefetch()
    a("v_bfe_u32 v3, v2, 2, 2")
    a("v_and_b32 v4, 1, v2")
    a("v_lshl_add_u32 v3, v3, 1, v4")
    a("v_bfe_u32 v4, v2, 1, 1")
    a("v_lshl_add_u32 v4, v3, 4, v4")
    a("v_lshrrev_b32 v5, 4, v2")
    a("v_xor_b32 v3, v3, v5")
    a("v_lshlrev_b32 v3, 4, v3")
    a(f"v_lshl_add_u32 v{vA0}, v4, 7, v3")
    a(f"s_cmp_eq_u32 s{sC}, 0")
    for jj in range(4):
        a(f"s_mov_b32 s{sTmp}, {(jj % NOWN)*16384}")
        a(f"s_mov_b32 s{sTmp2}, {PART+(jj&1)*16384}")
        a(f"s_cselect_b32 s{sAo[0][jj]}, s{sTmp}, s{sTmp2}")
        a(f"s_cselect_b32 s{sAo[1][jj]}, s{sTmp2}, s{sTmp}")

    def set_abase(jj):
        for e in range(2):
            a(f"v_add_u32 v{vA[jj&1][e][0]}, s{sAo[e][jj]}, v{vA0}")
            a(f"v_xor_b32 v{vA[jj&1][e][1]}, 64, v{vA[jj&1][e][0]}")

    set_abase(0)
    set_abase(1)
    a("v_bfe_u32 v3, v2, 2, 2")
    a("v_lshl_add_u32 v4, v5, 3, v3")
    a("v_lshlrev_b32 v4, 8, v4")
    a("v_and_b32 v6, 1, v5")
    a("v_lshl_add_u32 v3, v6, 2, v3")
    a(f"s_lshl_b32 s{sTmp}, s{sWave}, 1")
    a(f"v_xor_b32 v3, s{sTmp}, v3")
    a("v_lshl_add_u32 v4, v3, 5, v4")
    a("v_and_b32 v3, 3, v2")
    a("v_lshl_add_u32 v4, v3, 3, v4")
    a(f"v_add_u32 v{vB[0]}, {RING}, v4")
    a(f"v_xor_b32 v{vB[1]}, 32, v{vB[0]}")
    vB2 = [253, 60]
    a(f"v_add_u32 v{vB2[0]}, 0x8000, v{vB[0]}")
    a(f"v_add_u32 v{vB2[1]}, 0x8000, v{vB[1]}")
    a("v_and_b32 v3, 15, v2")
    a(f"s_lshl_b32 s{sTmp}, s{sWave}, 5")
    a(f"v_add_u32 v3, s{sTmp}, v3")
    a("v_lshrrev_b32 v4, 2, v3")
    a("v_bfe_u32 v6, v3, 6, 1")
    a("v_xor_b32 v4, v4, v6")
    a("v_lshlrev_b32 v4, 4, v4")
    a("v_and_b32 v6, 3, v3")
    a("v_lshl_add_u32 v4, v6, 2, v4")
    a(f"v_lshl_add_u32 v{vT[0]}, v5, 14, v4")
    a(f"v_add_u32 v{vT[1]}, 64, v{vT[0]}")
    a(f"s_mov_b32 s{sMask3}, 0")
    a(f"s_mov_b32 s{sMask3+1}, 0xffff0000")
    a(f"s_mov_b32 s{sMaskLast}, 0")
    a(f"s_cmp_eq_u32 s{sTt}, {NTILE-1}")
    a(f"s_cselect_b32 s{sMaskLast+1}, s{sMask3+1}, 0")
    a(f"s_mov_b32 s{sMaskG1}, 0xffff0000")
    a(f"s_mov_b32 s{sMaskG1+1}, 0")
    a("s_waitcnt lgkmcnt(0)")
    common_late()
    a(f"s_lshl_b32 s{sSlot}, s{sGrp}, 2")
    a(f"s_add_u32 s{sSlot}, s{sSlot}, s{sWave}")
    a(f"s_lshl_b32 s{sSlot}, s{sSlot}, 14")
    a(f"s_lshl_b32 s{sTmp}, s{sTt}, 8")
    a(f"s_add_u32 s{sTmp}, s{sTmp}, s{sSlot}")
    a(f"v_lshl_add_u32 v{vSl}, v2, 2, s{sTmp}")
    sN = sAny
    a(f"s_mov_b64 s[{sN}:{sN+1}], {1 if opt.nononce else 0}")
    a(f"s_cmp_lg_u32 s{sWave}, 0")
    a("s_cbranch_scc1 L_nosent")
    a("s_cmp_lg_u32 s2, 0" if not opt.nononce else "s_cmp_eq_u32 s2, s2")
    a("s_cbranch_scc1 L_nonon")
    a(f"s_memrealtime s[{sN}:{sN+1}]")
    a("v_lshlrev_b32 v3, 6, v2")
    a("s_waitcnt lgkmcnt(0)")
    a(f"s_or_b32 s{sN}, s{sN}, 1")
    a(f"v_mov_b32 v{vt[0]}, s{sN}")
    a(f"v_mov_b32 v{vt[1]}, s{sN+1}")
    a("s_mov_b64 exec, 15")
    a(f"buffer_store_dwordx2 v[{vt[0]}:{vt[1]}], v3, s[{SDBG}:{SDBG+3}], 0 offen sc1")
    a("s_mov_b64 exec, -1")
    a.label("L_nonon")
    a.label("L_nosent")
    a(f"s_mov_b32 s{sSent}, s{sTmp}")
    srd(SG, 8, 512)
    srd(SB, 10, 512)
    if STAMP:
        a("v_writelane_b32 v63, s94, 0")
        a("v_writelane_b32 v63, s96, 1")
    for i in range(4):
        a(f"s_add_u32 s{sPoll+i}, s{sSlot}, {i*4096}")
    a("v_and_b32 v3, 7, v2")
    a("v_lshlrev_b32 v3, 2, v3")
    a("v_lshrrev_b32 v4, 4, v2")
    a("v_add_u32 v3, v3, v4")
    a(f"s_lshl_b32 s{sTmp}, s{sWave}, 5")
    a(f"v_add_u32 v3, s{sTmp}, v3")
    a(f"v_lshlrev_b32 v{vPar}, 2, v3")
    a(f"v_add_u32 v{vPar}, {PAR}, v{vPar}")
    a(f"s_lshl_b32 s{sTmp}, s{sC}, 7")
    a(f"v_add_lshl_u32 v3, v3, s{sTmp}, 1")
    a(f"buffer_load_ushort v{vBe}, v3, s[{SB}:{SB+3}], 0 offen")
    a(f"buffer_load_ushort v{vG}, v3, s[{SG}:{SG+3}], 0 offen")
    a(f"v_lshlrev_b32 v{vPo}, 4, v2")
    a(f"v_cmp_gt_u32 vcc, 48, v2")
    a(f"v_mov_b32 v{vt[5]}, 0x7ff00000")
    a("s_nop 0")
    a(f"v_cndmask_b32 v{vPo15}, v{vt[5]}, v{vPo}, vcc")
    a(f"s_cmp_lg_u32 s{sWave}, 0")
    a(f"s_cselect_b32 s{sFlagged}, 1, 0")
    vN = 254

    def proto_start():
        lab = a.newlab("L_ps")
        a(f"s_cmp_lg_u32 s{sFlagged}, 0")
        a(f"s_cbranch_scc1 {lab}")
        a("v_lshrrev_b32 v3, 4, v2")
        a("v_lshlrev_b32 v3, 14, v3")
        a("v_and_b32 v4, 15, v2")
        a("v_lshl_add_u32 v3, v4, 4, v3")
        for r in range(4):
            a(f"v_mov_b32 v{vt[r]}, -1")
        a(f"buffer_store_dwordx4 v[{vt[0]}:{vt[3]}], v3, s[{SWS}:{SWS+3}], s{sSent} offen sc1")
        a(f"buffer_load_dwordx2 v[{vN}:{vN+1}], off, s[{SDBG}:{SDBG+3}], 0 sc1")
        a.label(lab)

    def proto_step(blocking):
        lab, top, again = a.newlab("L_pt"), a.newlab("L_ptt"), a.newlab("L_pta")
        a(f"s_cmp_lg_u32 s{sFlagged}, 0")
        a(f"s_cbranch_scc1 {lab}")
        if not blocking:
            a(f"s_getreg_b32 s{sTmp}, hwreg(HW_REG_IB_STS, 0, 4)")
            a(f"s_cmp_lg_u32 s{sTmp}, 0")
            a(f"s_cbranch_scc1 {lab}")
        else:
            a(f"s_mov_b32 s{sSpin}, 0")
        a.label(top)
        a("s_waitcnt vmcnt(0)")
        if opt.nononce:
            a(f"v_mov_b32 v{vN}, 1")
            a(f"v_mov_b32 v{vN+1}, 0")
            a("s_nop 0")
        a(f"v_readfirstlane_b32 s{sTmp}, v{vN}")
        a(f"s_cmp_eq_u32 s{sTmp}, 0")
        a(f"s_cbranch_scc1 {again}")
        a(f"v_mov_b32 v3, {NON}")
        a(f"s_lshl_b32 s{sTmp}, s{sGrp}, 6")
        a(f"s_add_u32 s{sTmp}, s{sTmp}, s{sTt}")
        a(f"s_lshl_b32 s{sTmp}, s{sTmp}, 7")
        a(f"s_add_u32 s{sTmp}, s{sTmp}, {RDY}")
        a("s_mov_b64 exec, 1")
        a(f"ds_write_b64 v3, v[{vN}:{vN+1}]")
        a(f"buffer_store_dwordx2 v[{vN}:{vN+1}], off, s[{SWS}:{SWS+3}], s{sTmp} sc1")
        a("s_mov_b64 exec, -1")
        a(f"s_mov_b32 s{sFlagged}, 1")
        a(f"s_branch {lab}")
        a.label(again)
        a(f"buffer_load_dwordx2 v[{vN}:{vN+1}], off, s[{SDBG}:{SDBG+3}], 0 sc1")
        if blocking:
            a(f"s_add_u32 s{sSpin}, s{sSpin}, 1")
            a(f"s_cmp_le_u32 s{sSpin}, {SPIN_MAX}")
            a(f"s_cbranch_scc1 {top}")
        a.label(lab)

    lds = {"n": 0, "done": -1}
    prod = {}

    def ldsop(txt, dst=None):
        if (opt.noa and txt.startswith("ds_read_b128")) or (opt.nob and txt.startswith("ds_read_b64_tr")):
            return
        if opt.nomfma and (txt.startswith("ds_read_b64_tr") or (txt.startswith("ds_read_b128") and dst != vF)):
            return
        a(txt)
        if dst is not None:
            prod[dst] = lds["n"]
        lds["n"] += 1

    def need(regs):
        if opt.nowait:
            return
        idx = max(prod[r] for r in regs)
        if idx > lds["done"]:
            cnt = lds["n"] - 1 - idx
            a(f"s_waitcnt lgkmcnt({min(cnt,15)})")
            lds["done"] = idx if cnt <= 15 else lds["n"] - 1 - 15

    def a_reads(k, mb):
        j, ks2 = k // 2, k % 2
        g = (8 * k + mb) % NAG
        out = []
        for e in range(2):
            out.append((f"ds_read_b128 v[{FA[g][e]}:{FA[g][e]+3}], v{vA[j&1][e][ks2]} offset:{mb*256}", FA[g][e]))
        return out

    def b_reads(k, tap):
        u = 3 * k + tap
        out = []
        for nb in range(2):
            d = FB[k & 1][tap * 2 + nb]
            for t in range(2):
                sl = u % NSLOT
                vb, off = (vB[nb], sl * 8192) if sl < 4 else (vB2[nb], sl * 8192 - 0x8000)
                out.append((f"ds_read_b64_tr_b16 v[{d+2*t}:{d+2*t+1}], v{vb} offset:{off+t*1024}", (d, t)))
        return out

    def check_level(lvl, prefetched):
        lab, ok = a.newlab("L_lv"), a.newlab("L_lvok")
        if prefetched:
            need([vF])
            a(f"v_min3_u32 v{vF}, v{vF}, v{vF+1}, v{vF+2}")
            a(f"v_min_u32 v{vF}, v{vF}, v{vF+3}")
            a(f"v_cmp_le_u32 vcc, {lvl}, v{vF}")
            a(f"s_cbranch_vccnz {ok}")
        a(f"s_mov_b32 s{sSpin}, 0")
        a.label(lab)
        a(f"s_add_u32 s{sSpin}, s{sSpin}, 1")
        a(f"s_cmp_gt_u32 s{sSpin}, {SPIN_MAX*8}")
        a(f"s_cbranch_scc1 {ok}")
        a(f"ds_read_b128 v[{vF}:{vF+3}], v{vFl}")
        a("s_waitcnt lgkmcnt(0)")
        a(f"v_min3_u32 v{vF}, v{vF}, v{vF+1}, v{vF+2}")
        a(f"v_min_u32 v{vF}, v{vF}, v{vF+3}")
        a(f"v_cmp_le_u32 vcc, {lvl}, v{vF}")
        a(f"s_cbranch_vccz {lab}")
        a.label(ok)
        trace(f"lv{lvl}")

    def mf(d, fa, fb, zero):
        if opt.nomfma:
            return
        c = "0" if zero else f"v[{d}:{d+3}]"
        need([fa, (fb, 0), (fb, 1)])
        if opt.fixop:
            fa, fb = 240, 244
        a(f"v_mfma_f32_16x16x32_bf16 v[{d}:{d+3}], v[{fa}:{fa+3}], v[{fb}:{fb+3}], {c}")

    def done_write(val):
        if opt.nodone:
            return
        a(f"v_mov_b32 v{vt[6]}, {val}")
        ldsop(f"ds_write_b32 v{vDn}, v{vt[6]}")

    a("s_barrier")
    stamp(1, vt[0], vt[1])
    for tap in range(3):
        for r in b_reads(0, tap):
            ldsop(*r)
        if tap == 0:
            for r in a_reads(0, 0):
                ldsop(*r)
    PD = opt.pd
    for g in range(1, PD):
        for r in a_reads(0, g):
            ldsop(*r)
    CHK = opt.chk
    BSP = opt.bsp
    assert CHK + BSP <= 8 and CHK <= 8 - PD
    for k in range(8):
        a.c(f"---- step {k}")
        fb = FB[k & 1]
        bq = []
        if k < 7:
            for tap in range(3):
                bq += [("l", r) for r in b_reads(k + 1, tap)]
        for mb in range(8):
            g = (8 * k + mb) % NAG
            E, O = FA[g]
            z = k == 0
            if opt.chain:
                seq = [(P[0] + 4 * mb, E, fb[0], z), (P[0] + 4 * mb, O, fb[2], False), (P[1] + 4 * mb, O, fb[3], z),
                       (P[1] + 4 * mb, E, fb[1], False), (Q[1] + 4 * mb, E, fb[5], z), (Q[0] + 4 * mb, E, fb[4], z)]
                gaps = [1, 3, 4, 5] if opt.chain == 2 else [0, 1, 2, 3, 4, 5]
            else:
                seq = [(P[0] + 4 * mb, E, fb[0], z), (P[1] + 4 * mb, E, fb[1], z), (Q[0] + 4 * mb, E, fb[4], z),
                       (Q[1] + 4 * mb, E, fb[5], z), (P[0] + 4 * mb, O, fb[2], False), (P[1] + 4 * mb, O, fb[3], False)]
                gaps = [0, 1, 2, 3, 4, 5]
            side = []
            nx = 8 * k + mb + PD
            if nx < 64:
                side += [("l", r) for r in a_reads(nx // 8, nx % 8)]
            if k < 7 and CHK <= mb < CHK + BSP:
                left = CHK + BSP - mb
                tk = (len(bq) + left - 1) // left
                side += bq[:tk]
                bq = bq[tk:]
            if mb == 0 and k in (2, 4):
                set_abase(k // 2 + 1)
            need([E, O])
            for i in range(6):
                mf(*seq[i])
                if k < 7 and mb == CHK and i == (1 if opt.chain else 0):
                    a("s_barrier")
                if i in gaps and not (k < 7 and mb == CHK and opt.chain and i == 0):
                    rem = len([g_ for g_ in gaps if g_ >= i])
                    take = (len(side) + rem - 1) // rem
                    for _ in range(take):
                        kind, r = side.pop(0)
                        ldsop(*r)
            assert not side
    stamp(2, vt[0], vt[1])
    a("s_nop 7")
    Zr = [vt[0], vt[2]]
    for nb in range(2):
        y, x2 = vt[2 * nb], vt[2 * nb + 1]
        a(f"v_mov_b32 v{y}, v{Q[nb]}")
    a("s_nop 1")
    for nb in range(2):
        y, x2 = vt[2 * nb], vt[2 * nb + 1]
        a(f"v_permlane16_swap_b32 v{Q[nb]}, v{y}")
    a("s_nop 1")
    for nb in range(2):
        y, x2 = vt[2 * nb], vt[2 * nb + 1]
        a(f"v_mov_b32 v{x2}, v{Q[nb]}")
    a("s_nop 1")
    for nb in range(2):
        y, x2 = vt[2 * nb], vt[2 * nb + 1]
        a(f"v_permlane32_swap_b32 v{Q[nb]}, v{x2}")
    a("s_nop 1")
    for nb in range(2):
        y, x2 = vt[2 * nb], vt[2 * nb + 1]
        a(f"v_cndmask_b32 v{y}, v{y}, v{x2}, s[{sMaskG1}:{sMaskG1+1}]")
    SA = [[192, 196], [200, 204]]
    for nb in range(2):
        p, q = P[nb], Q[nb]
        for r in range(0, 30, 2):
            a(f"v_pk_add_f32 v[{p+r}:{p+r+1}], v[{p+r}:{p+r+1}], v[{q+r+2}:{q+r+3}]")
        a(f"v_add_f32 v{p+30}, v{p+30}, v{q+1}")
        a(f"v_add_f32 v{p+31}, v{p+31}, v{Zr[nb]}")
        a(f"v_cndmask_b32 v{p+31}, v{p+31}, 0, s[{sMask3}:{sMask3+1}]")
        a(f"v_cndmask_b32 v{p+29}, v{p+29}, 0, s[{sMaskLast}:{sMaskLast+1}]")
        a(f"v_cndmask_b32 v{p+27}, v{p+27}, 0, s[{sMaskLast}:{sMaskLast+1}]")
        s1, s2 = SA[nb]
        a(f"v_pk_add_f32 v[{s1}:{s1+1}], v[{p}:{p+1}], v[{p+2}:{p+3}]")
        a(f"v_pk_add_f32 v[{s1+2}:{s1+3}], v[{p+4}:{p+5}], v[{p+6}:{p+7}]")
        a(f"v_pk_mul_f32 v[{s2}:{s2+1}], v[{p}:{p+1}], v[{p}:{p+1}]")
        a(f"v_pk_mul_f32 v[{s2+2}:{s2+3}], v[{p+2}:{p+3}], v[{p+2}:{p+3}]")
        for r in range(4, 32, 2):
            o = 2 * ((r >> 1) & 1)
            x = f"v[{p+r}:{p+r+1}]"
            a(f"v_pk_fma_f32 v[{s2+o}:{s2+o+1}], {x}, {x}, v[{s2+o}:{s2+o+1}]")
            if r >= 8:
                a(f"v_pk_add_f32 v[{s1+o}:{s1+o+1}], v[{s1+o}:{s1+o+1}], {x}")
    for nb in range(2):
        for st in range(2):
            s = SA[nb][st]
            a(f"v_pk_add_f32 v[{s}:{s+1}], v[{s}:{s+1}], v[{s+2}:{s+3}]")
    for nb in range(2):
        for st in range(2):
            s = SA[nb][st]
            a(f"v_add_f32 v{s}, v{s}, v{s+1}")

    def reduce4(v0_, v1_, v2_, v3_):
        a("s_nop 1")
        a(f"v_permlane16_swap_b32 v{v0_}, v{v1_}")
        a(f"v_permlane16_swap_b32 v{v2_}, v{v3_}")
        a("s_nop 1")
        a(f"v_add_f32 v{v0_}, v{v0_}, v{v1_}")
        a(f"v_add_f32 v{v2_}, v{v2_}, v{v3_}")
        a("s_nop 1")
        a(f"v_permlane32_swap_b32 v{v0_}, v{v2_}")
        a("s_nop 1")
        a(f"v_add_f32 v{v0_}, v{v0_}, v{v2_}")

    reduce4(SA[0][0], SA[1][0], SA[0][1], SA[1][1])
    S1 = SA[0][0]
    a(f"v_cmp_eq_u32 vcc, -1, v{S1}")
    a(f"v_mov_b32 v{S1+1}, 0x7fc00000")
    a("s_nop 0")
    a(f"v_cndmask_b32 v{S1}, v{S1}, v{S1+1}, vcc")
    a(f"buffer_store_dword v{S1}, v{vSl}, s[{SWS}:{SWS+3}], 0 offen sc1")
    stamp(3, vt[0], vt[1])
    trace("pub")
    trace_dump(1)
    a("s_barrier")
    PL = [128 + 4 * m for m in range(16)]

    def poll_load(m):
        vo = vPo15 if m == 15 else vPo
        return f"buffer_load_dwordx4 v[{PL[m]}:{PL[m]+3}], v{vo}, s[{SWS}:{SWS+3}], s{sPoll+(m>>2)} offen offset:{(m&3)*1024} sc1"

    def t_writes():
        for nb in range(2):
            for r in range(0, 32, 2):
                o0 = (r >> 1) * 2
                a(f"ds_write2st64_b32 v{vT[nb]}, v{P[nb]+r}, v{P[nb]+r+1} offset0:{o0} offset1:{o0+32}")

    if opt.pollfirst:
        for m in range(16):
            a(poll_load(m))
        t_writes()
    else:
        t_writes()
        for m in range(16):
            a(poll_load(m))
    tread_setup()
    a("s_waitcnt lgkmcnt(0)")
    a("s_barrier")
    tread_issue()
    PM = [4 + 2 * i for i in range(12)] + [40 + 2 * i for i in range(4)]
    a(f"s_mov_b32 s{sSpin}, 0")
    a("s_waitcnt vmcnt(0)")
    for m in range(16):
        a(f"v_max3_u32 v{vt[m&3]}, v{PL[m]}, v{PL[m]+1}, v{PL[m]+2}")
        a(f"v_max_u32 v{vt[m&3]}, v{vt[m&3]}, v{PL[m]+3}")
        a(f"v_cmp_eq_u32 s[{PM[m]}:{PM[m]+1}], -1, v{vt[m&3]}")
    a.label("L_poll")
    a(f"s_or_b64 s[{sAny}:{sAny+1}], s[{PM[0]}:{PM[0]+1}], s[{PM[1]}:{PM[1]+1}]")
    for m in range(2, 16):
        a(f"s_or_b64 s[{sAny}:{sAny+1}], s[{sAny}:{sAny+1}], s[{PM[m]}:{PM[m]+1}]")
    a("s_cbranch_scc0 L_pdone")
    a(f"s_add_u32 s{sSpin}, s{sSpin}, 1")
    a(f"s_cmp_gt_u32 s{sSpin}, {SPIN_MAX}")
    a("s_cbranch_scc1 L_pdone")
    for m in range(16):
        lab = a.newlab("L_pl")
        a(f"s_mov_b64 exec, s[{PM[m]}:{PM[m]+1}]")
        a(f"s_cbranch_execz {lab}")
        a(poll_load(m))
        a.label(lab)
    a("s_waitcnt vmcnt(0)")
    for m in range(16):
        lab = a.newlab("L_pc")
        a(f"s_mov_b64 exec, s[{PM[m]}:{PM[m]+1}]")
        a(f"s_cbranch_execz {lab}")
        a(f"v_max3_u32 v{vt[0]}, v{PL[m]}, v{PL[m]+1}, v{PL[m]+2}")
        a(f"v_max_u32 v{vt[0]}, v{vt[0]}, v{PL[m]+3}")
        a(f"v_cmp_eq_u32 s[{PM[m]}:{PM[m]+1}], -1, v{vt[0]}")
        a.label(lab)
    a("s_mov_b64 exec, -1")
    a("s_branch L_poll")
    a.label("L_pdone")
    a("s_mov_b64 exec, -1")
    stamp(4, vt[0], vt[1])
    step = 1
    while step < 16:
        for m in range(0, 16, 2 * step):
            for hh in range(2):
                d, s_ = PL[m] + 2 * hh, PL[m + step] + 2 * hh
                a(f"v_pk_add_f32 v[{d}:{d+1}], v[{d}:{d+1}], v[{s_}:{s_+1}]")
        step *= 2
    v0_, v1_, v2_, v3_ = PL[0], PL[0] + 1, PL[0] + 2, PL[0] + 3
    reduce4(v0_, v1_, v2_, v3_)
    a("s_nop 1")
    a(f"v_mov_b32_dpp v{v1_}, v{v0_} row_ror:8 row_mask:0xf bank_mask:0xf")
    c1 = -2.0 * math.sqrt(2.0 / math.pi) * math.log2(math.e)
    c2 = c1 * 0.044715
    sc = -((-c2) ** (1.0 / 3.0))
    a(f"v_mul_f32 v{v0_}, {hex(f2u(1.0/L_OUT))}, v{v0_}")
    a(f"v_mul_f32 v{v1_}, {hex(f2u(1.0/L_OUT))}, v{v1_}")
    a(f"v_fma_f32 v{v1_}, -v{v0_}, v{v0_}, v{v1_}")
    a(f"v_max_f32 v{v1_}, 0, v{v1_}")
    a(f"v_add_f32 v{v1_}, {hex(f2u(1e-5))}, v{v1_}")
    a(f"v_rsq_f32 v{v1_}, v{v1_}")
    a(f"v_lshlrev_b32 v{vG}, 16, v{vG}")
    a(f"v_lshlrev_b32 v{vBe}, 16, v{vBe}")
    a(f"v_mul_f32 v{vG}, {hex(f2u(sc))}, v{vG}")
    a(f"v_mul_f32 v{vBe}, {hex(f2u(sc))}, v{vBe}")
    a(f"v_mul_f32 v{v1_}, v{v1_}, v{vG}")
    a(f"v_fma_f32 v{v0_}, -v{v0_}, v{v1_}, v{vBe}")
    a(f"s_mov_b32 s{sTmp}, 0x00ff00ff")
    a(f"s_mov_b32 exec_lo, s{sTmp}")
    a(f"s_mov_b32 exec_hi, s{sTmp}")
    a(f"ds_write2_b32 v{vPar}, v{v1_}, v{v0_} offset0:0 offset1:128")
    a("s_mov_b64 exec, -1")
    a("s_waitcnt lgkmcnt(0)")
    a("s_barrier")

    a.label("L_epi")
    SCL, SHF = 16, 24
    a(f"ds_read_b128 v[{SCL}:{SCL+3}], v10")
    a(f"ds_read_b128 v[{SCL+4}:{SCL+7}], v10 offset:16")
    a(f"ds_read_b128 v[{SHF}:{SHF+3}], v10 offset:512")
    a(f"ds_read_b128 v[{SHF+4}:{SHF+7}], v10 offset:528")
    k1 = c1 / sc
    a(f"s_mov_b32 s{sK}, {hex(f2u(k1))}")
    a(f"s_mov_b32 s{sK+1}, {hex(f2u(k1))}")
    a(f"s_mov_b32 s{sK+2}, {hex(f2u(sc))}")
    a(f"s_mov_b32 s{sK+3}, {hex(f2u(sc))}")
    a("s_waitcnt lgkmcnt(0)")
    W_, O_ = 32, 48
    for i in range(4):
        h = H[i]
        w_ = W_ + 8 * (i & 1)
        o_ = O_ + 4 * (i & 1)
        for p in range(4):
            a(f"v_pk_fma_f32 v[{h+2*p}:{h+2*p+1}], v[{h+2*p}:{h+2*p+1}], v[{SCL+2*p}:{SCL+2*p+1}], v[{SHF+2*p}:{SHF+2*p+1}]")
        for p in range(4):
            a(f"v_pk_fma_f32 v[{w_+2*p}:{w_+2*p+1}], v[{h+2*p}:{h+2*p+1}], v[{h+2*p}:{h+2*p+1}], s[{sK}:{sK+1}]")
        for p in range(4):
            a(f"v_pk_mul_f32 v[{w_+2*p}:{w_+2*p+1}], v[{w_+2*p}:{w_+2*p+1}], v[{h+2*p}:{h+2*p+1}]")
        for e in range(8):
            a(f"v_exp_f32 v{w_+e}, v{w_+e}")
        for p in range(4):
            a(f"v_pk_fma_f32 v[{w_+2*p}:{w_+2*p+1}], v[{w_+2*p}:{w_+2*p+1}], s[{sK+2}:{sK+3}], s[{sK+2}:{sK+3}]")
        for e in range(8):
            a(f"v_rcp_f32 v{w_+e}, v{w_+e}")
        for p in range(4):
            a(f"v_pk_mul_f32 v[{w_+2*p}:{w_+2*p+1}], v[{w_+2*p}:{w_+2*p+1}], v[{h+2*p}:{h+2*p+1}]")
        for p in range(4):
            a(f"v_cvt_pk_bf16_f32 v{o_+p}, v{w_+2*p}, v{w_+2*p+1}")
        vo = 9 if i == 3 else 8
        a(f"buffer_store_dwordx4 v[{o_}:{o_+3}], v{vo}, s[{SO}:{SO+3}], s{sOutB+i} offen{ONT}")
    if STAMP:
        a("v_lshrrev_b32 v60, 6, v0")
        a(f"v_cmp_eq_u32 vcc, {max(opt.stampw,0)}, v60")
        a("s_cbranch_vccz L_end")
        stamp(5)
        a("s_waitcnt vmcnt(0)")
        stamp(6)
        stamp_dump("0x3fff")
    a.label("L_end")
    a("s_endpgm")
    a.label("L_codeend")

    hdr = open("cdna_kernels/%s.s.ref" % NAME).read().split("\n")
    head = []
    for ln in hdr:
        if ln.startswith("; @launch"):
            head.append("; @launch grid=(254,1,1) block=(512,1,1) lds=163840")
            break
        head.append(ln)
    out = "\n".join(head) + "\n"
    out += f""".amdgcn_target "amdgcn-amd-amdhsa--gfx950"
.text
.globl {NAME}_kernel
.p2align 8
.type {NAME}_kernel,@function
{NAME}_kernel:
"""
    out += a.text()
    out += f""".section .rodata,"a"
.p2align 6
.amdhsa_kernel {NAME}_kernel
  .amdhsa_next_free_vgpr 256
  .amdhsa_next_free_sgpr 102
  .amdhsa_accum_offset 256
  .amdhsa_group_segment_fixed_size 0
  .amdhsa_kernarg_size 56
  .amdhsa_user_sgpr_count 2
  .amdhsa_user_sgpr_kernarg_segment_ptr 1
  .amdhsa_system_sgpr_workgroup_id_x 1
.end_amdhsa_kernel
"""
    return out


def parse(argv=None):
    ap = argparse.ArgumentParser()
    ap.add_argument("-o", default="cdna_kernels/%s.s" % NAME)
    ap.add_argument("--stamp", type=int, default=0)
    ap.add_argument("--skipdma", type=int, default=0)
    ap.add_argument("--sleep", type=int, default=1)
    ap.add_argument("--nomfma", type=int, default=0)
    ap.add_argument("--rot", type=int, default=1)
    ap.add_argument("--freerun", type=int, default=0)
    ap.add_argument("--trace", type=int, default=0)
    ap.add_argument("--nononce", type=int, default=0)
    ap.add_argument("--xpol", default="nt,nt")
    ap.add_argument("--nown", type=int, default=4)
    ap.add_argument("--nocheck", type=int, default=0)
    ap.add_argument("--prio", type=int, default=0)
    ap.add_argument("--lprio", type=int, default=0)
    ap.add_argument("--bsp", type=int, default=5)
    ap.add_argument("--esleep", type=int, default=1)
    ap.add_argument("--stampw", type=int, default=-1)
    ap.add_argument("--fl_ahead", type=int, default=2)
    ap.add_argument("--ntry", default="16,30,44")
    ap.add_argument("--nowait", type=int, default=0)
    ap.add_argument("--nodone", type=int, default=0)
    ap.add_argument("--ldvgpr", type=int, default=0)
    ap.add_argument("--nopub", type=int, default=0)
    ap.add_argument("--noa", type=int, default=0)
    ap.add_argument("--nob", type=int, default=0)
    ap.add_argument("--fixop", type=int, default=0)
    ap.add_argument("--lregion", type=int, default=-1)
    ap.add_argument("--caps", default="20,10,12")
    ap.add_argument("--ldelay", type=int, default=0)
    ap.add_argument("--chain", type=int, default=0)
    ap.add_argument("--xnt", type=int, default=1)
    ap.add_argument("--wpf", type=int, default=1)
    ap.add_argument("--wpf_pos", type=int, default=0)
    ap.add_argument("--cpf", type=int, default=10)
    ap.add_argument("--ostore", default="nt")
    ap.add_argument("--order", default="H0 W0 L0 P H1+W1 H2+W2 L1 H3+W3 L2 W4 W5 L3 W6 W7")
    ap.add_argument("--depth", type=int, default=6)
    ap.add_argument("--throttle", type=int, default=0)
    ap.add_argument("--pd", type=int, default=3)
    ap.add_argument("--chk", type=int, default=2)
    ap.add_argument("--pollfirst", type=int, default=1)
    o = ap.parse_args(argv)
    if o.ostore:
        o.ostore = " " + o.ostore.replace("+", " ")
    return o


if __name__ == "__main__":
    o = parse()
    open(o.o, "w").write(gen(o))
```

```python
import sys, math, struct, argparse

NAME = "standalone__self_sup_conv_stem_wavlm__speech"
L_OUT = 7999
TR = 127
NTILE = 63
XB_BATCH = 16000 * 512
X_BYTES = 2 * XB_BATCH
W_BYTES = 3 * 256 * 256 * 2
OUT_BYTES = 2 * L_OUT * 512
FLG = 163840
PAR = 65536
RDY = 0x40000
SPIN_MAX = 200000


def f2u(f):
    return struct.unpack("<I", struct.pack("<f", f))[0]


class Asm:
    def __init__(self):
        self.lines = []
        self.lab = 0

    def __call__(self, s):
        self.lines.append("    " + s)

    def label(self, n):
        self.lines.append(n + ":")

    def newlab(self, p="L"):
        self.lab += 1
        return f"{p}_{self.lab}"

    def c(self, s):
        self.lines.append("    ; " + s)

    def text(self):
        return "\n".join(self.lines) + "\n"


def xslot(kind, j):
    return 2 * (j % 3) + (0 if kind == "E" else 1)


def build_stream(spec):
    def X(which, j):
        return [("x", which, j, qq) for qq in range(4)]

    def Wu(u):
        return [("w", u, 0), ("w", u, 1)]

    def one(t):
        if t == "P":
            return [("pf",)]
        if t == "F":
            return [("fl",)]
        n = int(t[1:])
        if t[0] == "H":
            return X(0, n)
        if t[0] == "L":
            return X(1, n)
        if t[0] == "W":
            return Wu(3 * n) + Wu(3 * n + 1) + Wu(3 * n + 2)
        if t[0] == "U":
            return Wu(n)
        raise ValueError(t)

    def mix(a, b):
        out = []
        ia = ib = 0
        while ia < len(a) or ib < len(b):
            if ib >= len(b) or (ia < len(a) and ia * len(b) <= ib * len(a)):
                out.append(a[ia]); ia += 1
            else:
                out.append(b[ib]); ib += 1
        return out

    S = []
    for tok in spec.split():
        parts = [sum((one(t) for t in p.split(",")), []) for p in tok.split("+")]
        cur = parts[0]
        for p in parts[1:]:
            cur = mix(cur, p)
        S += cur
    assert len([t for t in S if t[0] not in ("pf", "fl")]) == 80 and len(set(S)) == len(S), (len(S), spec)
    return S


def gen(opt):
    a = Asm()
    STAMP = opt.stamp
    XPOL = [(" " + p.replace("+", " ")) if p != "-" else "" for p in opt.xpol.split(",")]
    ONT = opt.ostore
    D = opt.depth
    NOWN = opt.nown
    PART = NOWN * 16384
    RING = PART + 32768
    NSLOT = (FLG - RING) // 8192

    SX, SW, SO, SWS, SDBG, SG, SB = 20, 24, 28, 32, 36, 40, 44
    sT, sC, sBt, sTt, sGrp, sWave, sTmp, sTmp2 = 48, 49, 50, 51, 52, 53, 54, 55
    sXb0, sXb1, sXl0, sXl1, sWb, sWl, sOff = 56, 57, 58, 59, 60, 61, 62
    sLvl = 63
    sMask3, sMaskLast, sMaskG1 = 64, 66, 68
    sSlot = 70
    sPoll = 71
    sOutB = 75
    sNv = 79
    sK = 80
    sSt = 84
    sStB = 86
    sSpin = 87
    sEx = 88
    sPc = 90
    sAny = 92
    sPub = 93
    sSent, sFlagged = 90, 91
    sPM = 4

    def srd(d, p, nbytes):
        a(f"s_mov_b32 s{d}, s{p}")
        a(f"s_and_b32 s{d+1}, s{p+1}, 0xffff")
        a(f"s_mov_b32 s{d+2}, {nbytes}")
        a(f"s_mov_b32 s{d+3}, 0x20000")

    def stamp(idx, vt0=None, vt1=None):
        if not STAMP:
            return
        a(f"s_memrealtime s[{sSt}:{sSt+1}]")
        a("s_memtime s[98:99]")
        a("s_waitcnt lgkmcnt(0)")
        a(f"v_writelane_b32 v63, s{sSt}, {2*idx}")
        a(f"v_writelane_b32 v63, s98, {2*idx+1}")

    def stamp_dump(mask):
        a(f"s_mov_b64 exec, {mask}")
        a("v_lshlrev_b32 v60, 2, v2")
        a(f"buffer_store_dword v63, v60, s[{SWS}:{SWS+3}], s{sStB} offen")
        a("s_mov_b64 exec, -1")

    trc = {"n": 0, "names": []}

    def trace(name):
        if not opt.trace:
            return
        if trc["n"] >= 128:
            return
        a("s_memtime s[100:101]")
        a("s_waitcnt lgkmcnt(0)")
        a(f"v_writelane_b32 v{62 if trc['n'] < 64 else 61}, s100, {trc['n'] % 64}")
        trc["names"].append(name)
        trc["n"] += 1

    def trace_dump(half):
        if not opt.trace:
            return
        lab = a.newlab("L_td")
        a(f"s_cmp_lg_u32 s{sWave}, 0")
        a(f"s_cbranch_scc1 {lab}")
        a(f"s_lshl_b32 s{sTmp}, s2, 10")
        a(f"s_add_u32 s{sTmp}, s{sTmp}, {0x180000 + half*512}")
        a("v_lshlrev_b32 v63, 2, v2")
        a(f"buffer_store_dword v62, v63, s[{SWS}:{SWS+3}], s{sTmp} offen")
        a(f"buffer_store_dword v61, v63, s[{SWS}:{SWS+3}], s{sTmp} offen offset:256")
        a.label(lab)
        sys.stderr.write(f"TRACE{half}: " + ",".join(trc["names"]) + "\n")
        trc["n"] = 0
        trc["names"] = []

    if STAMP:
        a("s_memrealtime s[94:95]")
        a("s_memtime s[96:97]")
    a("s_load_dwordx8 s[4:11], s[0:1], 0")
    a("s_load_dwordx4 s[12:15], s[0:1], 32")
    a("s_load_dwordx2 s[16:17], s[0:1], 48")
    a(f"s_lshr_b32 s{sTmp}, s2, 4")
    a(f"s_lshl_b32 s{sTmp}, s{sTmp}, 3")
    a(f"s_and_b32 s{sTmp2}, s2, 7")
    a(f"s_add_u32 s{sT}, s{sTmp}, s{sTmp2}")
    a(f"s_cmp_ge_u32 s{sT}, {2*NTILE}")
    a("s_cbranch_scc1 L_end")
    a("v_lshrrev_b32 v1, 6, v0")
    a("v_and_b32 v2, 63, v0")
    a(f"v_readfirstlane_b32 s{sWave}, v1")
    a(f"s_bfe_u32 s{sC}, s2, 0x10003")
    a(f"s_cmp_ge_u32 s{sT}, {NTILE}")
    a(f"s_cselect_b32 s{sBt}, 1, 0")
    a(f"s_mul_i32 s{sTmp}, s{sBt}, {NTILE}")
    a(f"s_sub_u32 s{sTt}, s{sT}, s{sTmp}")
    a(f"s_cmp_lt_u32 s{sWave}, 4")
    a("s_cbranch_scc1 L_compute")

    def common_late():
        a(f"s_lshl_b32 s{sGrp}, s{sBt}, 1")
        a(f"s_add_u32 s{sGrp}, s{sGrp}, s{sC}")
        a(f"s_cmp_eq_u32 s{sTt}, {NTILE-1}")
        a(f"s_cselect_b32 s{sNv}, {TR - (L_OUT - TR*(NTILE-1))}, 0")
        a(f"s_sub_u32 s{sNv}, {TR}, s{sNv}")
        a(f"s_lshl_b32 s{sStB}, s2, 8")
        a(f"s_add_u32 s{sStB}, s{sStB}, 0x100000")
        srd(SO, 12, OUT_BYTES)
        srd(SWS, 16, 0x200000 if STAMP else 0x48000)
        srd(SDBG, 14, 256)
        a(f"s_mul_i32 s{sTmp}, s{sBt}, {L_OUT}")
        a(f"s_mul_i32 s{sTmp2}, s{sTt}, {TR}")
        a(f"s_add_u32 s{sTmp}, s{sTmp}, s{sTmp2}")
        a(f"s_lshl_b32 s{sOutB}, s{sTmp}, 9")
        for i in range(1, 4):
            a(f"s_add_u32 s{sOutB+i}, s{sOutB}, {i*16384}")

    a(f"s_sub_u32 s{sWave}, s{sWave}, 4")
    if opt.lprio:
        a(f"s_setprio {opt.lprio}")
    a("v_lshrrev_b32 v5, 3, v2")
    a("v_lshlrev_b32 v5, 10, v5")
    a(f"s_lshl_b32 s{sTmp}, s{sWave}, 1")
    a("v_and_b32 v6, 7, v2")
    a(f"v_xor_b32 v6, s{sTmp}, v6")
    a("v_lshl_add_u32 v3, v6, 4, v5")
    a("v_xor_b32 v4, 16, v3")
    a("v_lshrrev_b32 v6, 4, v2")
    a(f"s_lshr_b32 s{sTmp}, s{sWave}, 1")
    a(f"s_lshl_b32 s{sTmp}, s{sTmp}, 2")
    a(f"v_or_b32 v7, s{sTmp}, v6")
    a("v_bfe_u32 v8, v2, 1, 3")
    a("v_xor_b32 v7, v7, v8")
    a("v_lshlrev_b32 v5, 9, v6")
    a("v_lshl_add_u32 v5, v7, 5, v5")
    a("v_and_b32 v7, 1, v2")
    a("v_lshl_add_u32 v5, v7, 4, v5")
    a(f"s_bfe_u32 s{sTmp}, s2, 0x50003")
    a(f"s_lshl_b32 s{sTmp}, s{sTmp}, 2")
    a(f"s_add_u32 s{sTmp}, s{sTmp}, s{sWave}")
    a(f"s_mul_i32 s{sTmp}, s{sTmp}, 3072")
    a("v_min_u32 v6, 47, v2")
    a(f"v_lshl_add_u32 v6, v6, 6, s{sTmp}")
    a(f"s_mul_i32 s{sXb0}, s{sBt}, {XB_BATCH}")
    a(f"s_mul_i32 s{sTmp}, s{sTt}, {TR*1024}")
    a(f"s_add_u32 s{sXb0}, s{sXb0}, s{sTmp}")
    a(f"s_lshl_b32 s{sTmp}, s{sWave}, 15")
    a(f"s_add_u32 s{sXb0}, s{sXb0}, s{sTmp}")
    a(f"s_lshl_b32 s{sTmp}, s{sC}, 9")
    a(f"s_xor_b32 s{sTmp2}, s{sTmp}, 512")
    a(f"s_add_u32 s{sXb1}, s{sXb0}, s{sTmp2}")
    a(f"s_add_u32 s{sXb0}, s{sXb0}, s{sTmp}")
    a(f"s_lshl_b32 s{sXl0}, s{sWave}, 12")
    a(f"s_add_u32 s{sXl1}, s{sXl0}, {PART}")
    a(f"s_lshl_b32 s{sWb}, s{sWave}, 11")
    a(f"s_lshl_b32 s{sTmp}, s{sC}, 8")
    a(f"s_add_u32 s{sWb}, s{sWb}, s{sTmp}")
    a(f"s_lshl_b32 s{sWl}, s{sWave}, 10")
    a(f"s_add_u32 s{sWl}, s{sWl}, {RING}")
    RX0, RX1, RW = [64, 65, 66, 67], [71, 72, 73, 74], [80, 81, 82, 83]
    for j in range(4):
        if opt.rot:
            a(f"s_lshr_b32 s{sTmp}, s2, 4")
            a(f"s_add_u32 s{sTmp}, s{sTmp}, {j}")
            a(f"s_and_b32 s{sTmp}, s{sTmp}, 3")
        else:
            a(f"s_mov_b32 s{sTmp}, {j}")
        a(f"s_lshl_b32 s{sTmp2}, s{sTmp}, 7")
        a(f"s_add_u32 s{RX0[j]}, s{sXb0}, s{sTmp2}")
        a(f"s_add_u32 s{RX1[j]}, s{sXb1}, s{sTmp2}")
        a(f"s_lshl_b32 s{sTmp2}, s{sTmp}, 15")
        a(f"s_add_u32 s{RW[j]}, s{sWb}, s{sTmp2}")
    a("s_waitcnt lgkmcnt(0)")
    if STAMP == 2:
        stamp(8)
    srd(SX, 4, X_BYTES)
    srd(SW, 6, W_BYTES)
    trace("start")

    specs = opt.order.split("/")
    ncls = len(specs)
    if ncls > 1:
        a(f"s_and_b32 s{sTmp}, s{sT}, {ncls//2 - 1}")
        a(f"s_lshl_b32 s{sTmp}, s{sTmp}, 1")
        a(f"s_add_u32 s{sTmp}, s{sTmp}, s{sC}")
        for ci in range(1, ncls):
            a(f"s_cmp_eq_u32 s{sTmp}, {ci}")
            a(f"s_cbranch_scc1 L_cls{ci}")

    def lproto(cnt, blocking):
        lab, top, again = a.newlab("L_pt"), a.newlab("L_ptt"), a.newlab("L_pta")
        a(f"s_cmp_lg_u32 s{sFlagged}, 0")
        a(f"s_cbranch_scc1 {lab}")
        if blocking:
            a(f"s_mov_b32 s{sSpin}, 0")
        a.label(top)
        a(f"s_waitcnt vmcnt({cnt})")
        a(f"v_readfirstlane_b32 s{sTmp}, v26")
        a(f"s_cmp_eq_u32 s{sTmp}, 0")
        a(f"s_cbranch_scc1 {again}")
        a(f"s_lshl_b32 s{sTmp}, s{sGrp}, 6")
        a(f"s_add_u32 s{sTmp}, s{sTmp}, s{sTt}")
        a(f"s_lshl_b32 s{sTmp}, s{sTmp}, 7")
        a(f"s_add_u32 s{sTmp}, s{sTmp}, {RDY}")
        a("s_mov_b64 exec, 1")
        a(f"buffer_store_dwordx2 v[26:27], off, s[{SWS}:{SWS+3}], s{sTmp} sc1")
        a("s_mov_b64 exec, -1")
        a(f"s_mov_b32 s{sFlagged}, 1")
        a(f"s_branch {lab}")
        a.label(again)
        a(f"buffer_load_dwordx2 v[26:27], off, s[{SDBG}:{SDBG+3}], 0 sc1")
        if blocking:
            a(f"s_add_u32 s{sSpin}, s{sSpin}, 1")
            a(f"s_cmp_le_u32 s{sSpin}, {SPIN_MAX}")
            a(f"s_cbranch_scc1 {top}")
        a.label(lab)

    def emit_loader(spec):
        stream = build_stream(spec)
        if opt.skipdma:
            stream = [it for i, it in enumerate(stream) if i < 16 or not (
                opt.skipdma == 3 or (opt.skipdma == 1 and it[0] == "x") or (opt.skipdma == 2 and it[0] == "w"))]

        def earliest(it):
            if opt.freerun:
                return -2
            if it[0] == "w" and it[1] >= NSLOT:
                return (it[1] - NSLOT) // 3
            if it[0] == "x":
                ns = NOWN if it[1] == 0 else 2
                if it[2] >= ns:
                    return 2 * (it[2] - ns) + 2
            return -2

        def req(k):
            r = [("w", u, h) for u in range(3 * k, 3 * k + 3) for h in range(2)]
            r += [("x", wh, k // 2, qq) for wh in range(2) for qq in range(4)]
            return [it for it in r if it in stream]

        caps = [int(v) for v in opt.caps.split(",")]
        issued = []
        pos = 0

        def issue(it):
            i = len(issued)
            if it[0] == "x":
                _, wh, j, qq = it
                sb, sl = (RX0[j], sXl0) if wh == 0 else (RX1[j], sXl1)
                a(f"s_add_u32 m0, s{sl}, {((j % NOWN) if wh == 0 else (j & 1))*16384+qq*1024}")
                a(f"s_add_u32 s{sOff}, s{sb}, {qq*8192}")
                a(f"buffer_load_dwordx4 v{3+(qq>>1)}, s[{SX}:{SX+3}], s{sOff} offen{XPOL[wh]} lds")
            elif it[0] == "w":
                _, u, h = it
                k, tap = u // 3, u % 3
                a(f"s_add_u32 m0, s{sWl}, {(u%NSLOT)*8192+h*4096}")
                a(f"s_add_u32 s{sOff}, s{RW[k//2]}, {(tap*256+32*(k%2)+16*h)*512}")
                a(f"buffer_load_dwordx4 v5, s[{SW}:{SW+3}], s{sOff} offen lds")
            else:
                a(f"buffer_load_dword v8, v6, s[{SW}:{SW+3}], 0 offen")
            issued.append(it)

        for iv in range(-2, 7):
            nxt_req = req(iv + 2)
            cap = caps[min(iv + 2, len(caps) - 1)]
            cnt = 0
            if iv >= 0 and opt.ldelay:
                a(f"s_sleep {opt.ldelay}")
            while pos < len(stream) and earliest(stream[pos]) <= iv and (cnt < cap or any(r not in issued for r in nxt_req)):
                issue(stream[pos])
                pos += 1
                cnt += 1
                if iv == -2 and cnt == 14:
                    common_late()
            if iv == -2 and STAMP == 2:
                stamp(9)
                a(f"s_waitcnt vmcnt({cnt-1})")
                stamp(10)
                a(f"s_waitcnt vmcnt({cnt-5})")
                stamp(11)
            if iv == -1:
                lab = a.newlab("L_sn")
                a(f"s_cmp_lg_u32 s{sWave}, 3")
                a(f"s_cselect_b32 s{sFlagged}, 1, 0")
                a(f"s_cbranch_scc1 {lab}")
                a(f"s_lshl_b32 s{sTmp}, s{sGrp}, 16")
                a(f"s_lshl_b32 s{sTmp2}, s{sTt}, 8")
                a(f"s_add_u32 s{sTmp}, s{sTmp}, s{sTmp2}")
                a("v_lshrrev_b32 v24, 4, v2")
                a("v_lshlrev_b32 v24, 14, v24")
                a("v_and_b32 v25, 15, v2")
                a("v_lshl_add_u32 v24, v25, 4, v24")
                for r in range(28, 32):
                    a(f"v_mov_b32 v{r}, -1")
                a(f"buffer_store_dwordx4 v[28:31], v24, s[{SWS}:{SWS+3}], s{sTmp} offen sc1")
                a(f"buffer_load_dwordx2 v[26:27], off, s[{SDBG}:{SDBG+3}], 0 sc1")
                a.label(lab)
                a("v_min_u32 v18, 62, v2")
                a(f"s_lshl_b32 s{sTmp}, s{sGrp}, 13")
                a(f"s_add_u32 s{sTmp}, s{sTmp}, {RDY}")
                a(f"v_lshl_add_u32 v18, v18, 7, s{sTmp}")
            if iv in (0, 1, 2):
                lproto(cnt, False)
            if iv == 3:
                lproto(0, True) if False else lproto(cnt, False)
            if iv == 6:
                break
            for r in nxt_req:
                assert r in issued, (iv, r)
            if nxt_req:
                last = max(issued.index(r) for r in nxt_req)
                a(f"s_waitcnt vmcnt({min(63, len(issued) - 1 - last)})")
            a("s_barrier")
        assert pos == len(stream), (pos, len(stream))

    for ci, spec in enumerate(specs):
        a.label(f"L_cls{ci}")
        emit_loader(spec)
        if ci + 1 < ncls:
            a("s_branch L_ldone")
    a.label("L_ldone")
    if STAMP:
        stamp(7)
        stamp_dump("0xffc000")
    a(f"s_cmp_lg_u32 s{sWave}, 3")
    a("s_cbranch_scc1 L_cnt_ok")
    lproto(0, True)
    a(f"s_mov_b32 s{sSpin}, 0")
    a.label("L_cnt")
    a(f"buffer_load_dwordx2 v[16:17], v18, s[{SWS}:{SWS+3}], 0 offen sc1")
    a("s_waitcnt vmcnt(0)")
    a("v_cmp_ne_u64 vcc, v[16:17], v[26:27]")
    a("s_cbranch_vccz L_cnt_ok")
    a(f"s_add_u32 s{sSpin}, s{sSpin}, 1")
    a(f"s_cmp_gt_u32 s{sSpin}, {SPIN_MAX}")
    a("s_cbranch_scc1 L_cnt_ok")
    a("s_sleep 4")
    a("s_branch L_cnt")
    a.label("L_cnt_ok")
    H = [64 + 8 * i for i in range(4)]

    def tread_setup():
        a("v_and_b32 v3, 15, v0")
        a("v_lshrrev_b32 v4, 4, v0")
        a("v_lshlrev_b32 v5, 1, v3")
        a("v_lshrrev_b32 v6, 3, v3")
        a("v_xor_b32 v5, v5, v6")
        a("v_lshlrev_b32 v5, 4, v5")
        a("v_lshl_add_u32 v5, v4, 9, v5")
        a("v_xor_b32 v6, 16, v5")
        a(f"s_lshl_b32 s{sTmp}, s{sC}, 8")
        a(f"v_lshl_add_u32 v8, v4, 9, s{sTmp}")
        a("v_lshl_add_u32 v8, v3, 4, v8")
        a("v_add_u32 v4, 96, v4")
        a(f"v_cmp_gt_u32 vcc, s{sNv}, v4")
        a("v_mov_b32 v9, 0x7ff00000")
        a("v_lshlrev_b32 v10, 5, v3")
        a("v_cndmask_b32 v9, v9, v8, vcc")
        a(f"v_add_u32 v10, {PAR}, v10")

    def tread_issue():
        for i in range(4):
            a(f"ds_read_b128 v[{H[i]}:{H[i]+3}], v5 offset:{i*16384}")
            a(f"ds_read_b128 v[{H[i]+4}:{H[i]+7}], v6 offset:{i*16384}")

    a("s_waitcnt lgkmcnt(0)")
    tread_setup()
    a("s_barrier")
    a("s_barrier")
    tread_issue()
    a("s_barrier")
    a("s_branch L_epi")

    a.label("L_compute")
    if opt.prio:
        a(f"s_setprio {opt.prio}")
    P = [64, 96]
    Q = [128, 160]
    FB = [[192 + 24 * s + 4 * i for i in range(6)] for s in range(2)]
    NAG = 4
    FA = [[8 + 8 * g, 12 + 8 * g] for g in range(NAG)]
    vA = [[[40, 41], [42, 43]], [[248, 249], [250, 251]]]
    vA0 = 252
    sAo = [[56, 57, 58, 59], [60, 61, 62, 63]]
    vB = [44, 45]
    vSl, vG, vBe = 46, 47, 48
    vT = [49, 50]
    vFl, vDn, vPar = 51, 52, 53
    vPo, vPo15 = 54, 55
    vF = 56
    vt = [240 + i for i in range(8)]

    def code_prefetch():
        lab = a.newlab("L_ncp")
        a(f"s_cmp_lg_u32 s{sWave}, 3")
        a(f"s_cbranch_scc1 {lab}")
        a(f"s_getpc_b64 s[{sPc}:{sPc+1}]")
        a.label("L_pcref")
        a(f"s_sub_u32 s{sPc}, s{sPc}, L_pcref-{NAME}_kernel")
        a(f"s_subb_u32 s{sPc+1}, s{sPc+1}, 0")
        a(f"s_bfe_u32 s{sTmp}, s2, 0x50003")
        a(f"s_mul_i32 s{sTmp}, s{sTmp}, {opt.cpf*64}")
        a(f"v_min_u32 v3, {opt.cpf-1}, v2")
        a(f"v_lshl_add_u32 v3, v3, 6, s{sTmp}")
        a(f"v_min_u32 v3, L_codeend-{NAME}_kernel-4, v3")
        a(f"global_load_dword v61, v3, s[{sPc}:{sPc+1}]")
        a.label(lab)

    if opt.cpf:
        code_prefetch()
    a("v_bfe_u32 v3, v2, 2, 2")
    a("v_and_b32 v4, 1, v2")
    a("v_lshl_add_u32 v3, v3, 1, v4")
    a("v_bfe_u32 v4, v2, 1, 1")
    a("v_lshl_add_u32 v4, v3, 4, v4")
    a("v_lshrrev_b32 v5, 4, v2")
    a("v_xor_b32 v3, v3, v5")
    a("v_lshlrev_b32 v3, 4, v3")
    a(f"v_lshl_add_u32 v{vA0}, v4, 7, v3")
    a(f"s_cmp_eq_u32 s{sC}, 0")
    for jj in range(4):
        a(f"s_mov_b32 s{sTmp}, {(jj % NOWN)*16384}")
        a(f"s_mov_b32 s{sTmp2}, {PART+(jj&1)*16384}")
        a(f"s_cselect_b32 s{sAo[0][jj]}, s{sTmp}, s{sTmp2}")
        a(f"s_cselect_b32 s{sAo[1][jj]}, s{sTmp2}, s{sTmp}")

    def set_abase(jj):
        for e in range(2):
            a(f"v_add_u32 v{vA[jj&1][e][0]}, s{sAo[e][jj]}, v{vA0}")
            a(f"v_xor_b32 v{vA[jj&1][e][1]}, 64, v{vA[jj&1][e][0]}")

    set_abase(0)
    set_abase(1)
    a("v_bfe_u32 v3, v2, 2, 2")
    a("v_lshl_add_u32 v4, v5, 3, v3")
    a("v_lshlrev_b32 v4, 8, v4")
    a("v_and_b32 v6, 1, v5")
    a("v_lshl_add_u32 v3, v6, 2, v3")
    a(f"s_lshl_b32 s{sTmp}, s{sWave}, 1")
    a(f"v_xor_b32 v3, s{sTmp}, v3")
    a("v_lshl_add_u32 v4, v3, 5, v4")
    a("v_and_b32 v3, 3, v2")
    a("v_lshl_add_u32 v4, v3, 3, v4")
    a(f"v_add_u32 v{vB[0]}, {RING}, v4")
    a(f"v_xor_b32 v{vB[1]}, 32, v{vB[0]}")
    vB2 = [253, 60]
    a(f"v_add_u32 v{vB2[0]}, 0x8000, v{vB[0]}")
    a(f"v_add_u32 v{vB2[1]}, 0x8000, v{vB[1]}")
    a("v_and_b32 v3, 15, v2")
    a(f"s_lshl_b32 s{sTmp}, s{sWave}, 5")
    a(f"v_add_u32 v3, s{sTmp}, v3")
    a("v_lshrrev_b32 v4, 2, v3")
    a("v_bfe_u32 v6, v3, 6, 1")
    a("v_xor_b32 v4, v4, v6")
    a("v_lshlrev_b32 v4, 4, v4")
    a("v_and_b32 v6, 3, v3")
    a("v_lshl_add_u32 v4, v6, 2, v4")
    a(f"v_lshl_add_u32 v{vT[0]}, v5, 14, v4")
    a(f"v_add_u32 v{vT[1]}, 64, v{vT[0]}")
    a(f"s_mov_b32 s{sMask3}, 0")
    a(f"s_mov_b32 s{sMask3+1}, 0xffff0000")
    a(f"s_mov_b32 s{sMaskLast}, 0")
    a(f"s_cmp_eq_u32 s{sTt}, {NTILE-1}")
    a(f"s_cselect_b32 s{sMaskLast+1}, s{sMask3+1}, 0")
    a(f"s_mov_b32 s{sMaskG1}, 0xffff0000")
    a(f"s_mov_b32 s{sMaskG1+1}, 0")
    a("s_waitcnt lgkmcnt(0)")
    common_late()
    a(f"s_lshl_b32 s{sSlot}, s{sGrp}, 2")
    a(f"s_add_u32 s{sSlot}, s{sSlot}, s{sWave}")
    a(f"s_lshl_b32 s{sSlot}, s{sSlot}, 14")
    a(f"s_lshl_b32 s{sTmp}, s{sTt}, 8")
    a(f"s_add_u32 s{sTmp}, s{sTmp}, s{sSlot}")
    a(f"v_lshl_add_u32 v{vSl}, v2, 2, s{sTmp}")
    sN = sAny
    a(f"s_mov_b64 s[{sN}:{sN+1}], {1 if opt.nononce else 0}")
    a(f"s_cmp_lg_u32 s{sWave}, 0")
    a("s_cbranch_scc1 L_nosent")
    a("s_cmp_lg_u32 s2, 0" if not opt.nononce else "s_cmp_eq_u32 s2, s2")
    a("s_cbranch_scc1 L_nonon")
    a(f"s_memrealtime s[{sN}:{sN+1}]")
    a("v_lshlrev_b32 v3, 6, v2")
    a("s_waitcnt lgkmcnt(0)")
    a(f"s_or_b32 s{sN}, s{sN}, 1")
    a(f"v_mov_b32 v{vt[0]}, s{sN}")
    a(f"v_mov_b32 v{vt[1]}, s{sN+1}")
    a("s_mov_b64 exec, 15")
    a(f"buffer_store_dwordx2 v[{vt[0]}:{vt[1]}], v3, s[{SDBG}:{SDBG+3}], 0 offen sc1")
    a("s_mov_b64 exec, -1")
    a.label("L_nonon")
    a.label("L_nosent")
    a(f"s_mov_b32 s{sSent}, s{sTmp}")
    srd(SG, 8, 512)
    srd(SB, 10, 512)
    if STAMP:
        a("v_writelane_b32 v63, s94, 0")
        a("v_writelane_b32 v63, s96, 1")
    for i in range(4):
        a(f"s_add_u32 s{sPoll+i}, s{sSlot}, {i*4096}")
    a("v_and_b32 v3, 7, v2")
    a("v_lshlrev_b32 v3, 2, v3")
    a("v_lshrrev_b32 v4, 4, v2")
    a("v_add_u32 v3, v3, v4")
    a(f"s_lshl_b32 s{sTmp}, s{sWave}, 5")
    a(f"v_add_u32 v3, s{sTmp}, v3")
    a(f"v_lshlrev_b32 v{vPar}, 2, v3")
    a(f"v_add_u32 v{vPar}, {PAR}, v{vPar}")
    a(f"s_lshl_b32 s{sTmp}, s{sC}, 7")
    a(f"v_add_lshl_u32 v3, v3, s{sTmp}, 1")
    a(f"buffer_load_ushort v{vBe}, v3, s[{SB}:{SB+3}], 0 offen")
    a(f"buffer_load_ushort v{vG}, v3, s[{SG}:{SG+3}], 0 offen")
    a(f"v_lshlrev_b32 v{vPo}, 4, v2")
    a(f"v_cmp_gt_u32 vcc, 48, v2")
    a(f"v_mov_b32 v{vt[5]}, 0x7ff00000")
    a("s_nop 0")
    a(f"v_cndmask_b32 v{vPo15}, v{vt[5]}, v{vPo}, vcc")
    a(f"s_cmp_lg_u32 s{sWave}, 0")
    a(f"s_cselect_b32 s{sFlagged}, 1, 0")
    vN = 254

    def proto_start():
        lab = a.newlab("L_ps")
        a(f"s_cmp_lg_u32 s{sFlagged}, 0")
        a(f"s_cbranch_scc1 {lab}")
        a("v_lshrrev_b32 v3, 4, v2")
        a("v_lshlrev_b32 v3, 14, v3")
        a("v_and_b32 v4, 15, v2")
        a("v_lshl_add_u32 v3, v4, 4, v3")
        for r in range(4):
            a(f"v_mov_b32 v{vt[r]}, -1")
        a(f"buffer_store_dwordx4 v[{vt[0]}:{vt[3]}], v3, s[{SWS}:{SWS+3}], s{sSent} offen sc1")
        a(f"buffer_load_dwordx2 v[{vN}:{vN+1}], off, s[{SDBG}:{SDBG+3}], 0 sc1")
        a.label(lab)

    def proto_step(blocking):
        lab, top, again = a.newlab("L_pt"), a.newlab("L_ptt"), a.newlab("L_pta")
        a(f"s_cmp_lg_u32 s{sFlagged}, 0")
        a(f"s_cbranch_scc1 {lab}")
        if not blocking:
            a(f"s_getreg_b32 s{sTmp}, hwreg(HW_REG_IB_STS, 0, 4)")
            a(f"s_cmp_lg_u32 s{sTmp}, 0")
            a(f"s_cbranch_scc1 {lab}")
        else:
            a(f"s_mov_b32 s{sSpin}, 0")
        a.label(top)
        a("s_waitcnt vmcnt(0)")
        if opt.nononce:
            a(f"v_mov_b32 v{vN}, 1")
            a(f"v_mov_b32 v{vN+1}, 0")
            a("s_nop 0")
        a(f"v_readfirstlane_b32 s{sTmp}, v{vN}")
        a(f"s_cmp_eq_u32 s{sTmp}, 0")
        a(f"s_cbranch_scc1 {again}")
        a(f"v_mov_b32 v3, {NON}")
        a(f"s_lshl_b32 s{sTmp}, s{sGrp}, 6")
        a(f"s_add_u32 s{sTmp}, s{sTmp}, s{sTt}")
        a(f"s_lshl_b32 s{sTmp}, s{sTmp}, 7")
        a(f"s_add_u32 s{sTmp}, s{sTmp}, {RDY}")
        a("s_mov_b64 exec, 1")
        a(f"ds_write_b64 v3, v[{vN}:{vN+1}]")
        a(f"buffer_store_dwordx2 v[{vN}:{vN+1}], off, s[{SWS}:{SWS+3}], s{sTmp} sc1")
        a("s_mov_b64 exec, -1")
        a(f"s_mov_b32 s{sFlagged}, 1")
        a(f"s_branch {lab}")
        a.label(again)
        a(f"buffer_load_dwordx2 v[{vN}:{vN+1}], off, s[{SDBG}:{SDBG+3}], 0 sc1")
        if blocking:
            a(f"s_add_u32 s{sSpin}, s{sSpin}, 1")
            a(f"s_cmp_le_u32 s{sSpin}, {SPIN_MAX}")
            a(f"s_cbranch_scc1 {top}")
        a.label(lab)

    lds = {"n": 0, "done": -1}
    prod = {}

    def ldsop(txt, dst=None):
        if (opt.noa and txt.startswith("ds_read_b128")) or (opt.nob and txt.startswith("ds_read_b64_tr")):
            return
        if opt.nomfma and (txt.startswith("ds_read_b64_tr") or (txt.startswith("ds_read_b128") and dst != vF)):
            return
        a(txt)
        if dst is not None:
            prod[dst] = lds["n"]
        lds["n"] += 1

    def need(regs):
        if opt.nowait:
            return
        idx = max(prod[r] for r in regs)
        if idx > lds["done"]:
            cnt = lds["n"] - 1 - idx
            a(f"s_waitcnt lgkmcnt({min(cnt,15)})")
            lds["done"] = idx if cnt <= 15 else lds["n"] - 1 - 15

    def a_reads(k, mb):
        j, ks2 = k // 2, k % 2
        g = (8 * k + mb) % NAG
        out = []
        for e in range(2):
            out.append((f"ds_read_b128 v[{FA[g][e]}:{FA[g][e]+3}], v{vA[j&1][e][ks2]} offset:{mb*256}", FA[g][e]))
        return out

    def b_reads(k, tap):
        u = 3 * k + tap
        out = []
        for nb in range(2):
            d = FB[k & 1][tap * 2 + nb]
            for t in range(2):
                sl = u % NSLOT
                vb, off = (vB[nb], sl * 8192) if sl < 4 else (vB2[nb], sl * 8192 - 0x8000)
                out.append((f"ds_read_b64_tr_b16 v[{d+2*t}:{d+2*t+1}], v{vb} offset:{off+t*1024}", (d, t)))
        return out

    def check_level(lvl, prefetched):
        lab, ok = a.newlab("L_lv"), a.newlab("L_lvok")
        if prefetched:
            need([vF])
            a(f"v_min3_u32 v{vF}, v{vF}, v{vF+1}, v{vF+2}")
            a(f"v_min_u32 v{vF}, v{vF}, v{vF+3}")
            a(f"v_cmp_le_u32 vcc, {lvl}, v{vF}")
            a(f"s_cbranch_vccnz {ok}")
        a(f"s_mov_b32 s{sSpin}, 0")
        a.label(lab)
        a(f"s_add_u32 s{sSpin}, s{sSpin}, 1")
        a(f"s_cmp_gt_u32 s{sSpin}, {SPIN_MAX*8}")
        a(f"s_cbranch_scc1 {ok}")
        a(f"ds_read_b128 v[{vF}:{vF+3}], v{vFl}")
        a("s_waitcnt lgkmcnt(0)")
        a(f"v_min3_u32 v{vF}, v{vF}, v{vF+1}, v{vF+2}")
        a(f"v_min_u32 v{vF}, v{vF}, v{vF+3}")
        a(f"v_cmp_le_u32 vcc, {lvl}, v{vF}")
        a(f"s_cbranch_vccz {lab}")
        a.label(ok)
        trace(f"lv{lvl}")

    def mf(d, fa, fb, zero):
        if opt.nomfma:
            return
        c = "0" if zero else f"v[{d}:{d+3}]"
        need([fa, (fb, 0), (fb, 1)])
        if opt.fixop:
            fa, fb = 240, 244
        a(f"v_mfma_f32_16x16x32_bf16 v[{d}:{d+3}], v[{fa}:{fa+3}], v[{fb}:{fb+3}], {c}")

    def done_write(val):
        if opt.nodone:
            return
        a(f"v_mov_b32 v{vt[6]}, {val}")
        ldsop(f"ds_write_b32 v{vDn}, v{vt[6]}")

    a("s_barrier")
    stamp(1, vt[0], vt[1])
    for tap in range(3):
        for r in b_reads(0, tap):
            ldsop(*r)
        if tap == 0:
            for r in a_reads(0, 0):
                ldsop(*r)
    PD = opt.pd
    for g in range(1, PD):
        for r in a_reads(0, g):
            ldsop(*r)
    CHK = opt.chk
    BSP = opt.bsp
    assert CHK + BSP <= 8 and CHK <= 8 - PD
    for k in range(8):
        a.c(f"---- step {k}")
        fb = FB[k & 1]
        bq = []
        if k < 7:
            for tap in range(3):
                bq += [("l", r) for r in b_reads(k + 1, tap)]
        for mb in range(8):
            g = (8 * k + mb) % NAG
            E, O = FA[g]
            z = k == 0
            if opt.chain:
                seq = [(P[0] + 4 * mb, E, fb[0], z), (P[0] + 4 * mb, O, fb[2], False), (P[1] + 4 * mb, O, fb[3], z),
                       (P[1] + 4 * mb, E, fb[1], False), (Q[1] + 4 * mb, E, fb[5], z), (Q[0] + 4 * mb, E, fb[4], z)]
                gaps = [1, 3, 4, 5] if opt.chain == 2 else [0, 1, 2, 3, 4, 5]
            else:
                seq = [(P[0] + 4 * mb, E, fb[0], z), (P[1] + 4 * mb, E, fb[1], z), (Q[0] + 4 * mb, E, fb[4], z),
                       (Q[1] + 4 * mb, E, fb[5], z), (P[0] + 4 * mb, O, fb[2], False), (P[1] + 4 * mb, O, fb[3], False)]
                gaps = [0, 1, 2, 3, 4, 5]
            side = []
            nx = 8 * k + mb + PD
            if nx < 64:
                side += [("l", r) for r in a_reads(nx // 8, nx % 8)]
            if k < 7 and CHK <= mb < CHK + BSP:
                left = CHK + BSP - mb
                tk = (len(bq) + left - 1) // left
                side += bq[:tk]
                bq = bq[tk:]
            if mb == 0 and k in (2, 4):
                set_abase(k // 2 + 1)
            need([E, O])
            for i in range(6):
                mf(*seq[i])
                if k < 7 and mb == CHK and i == (1 if opt.chain else 0):
                    a("s_barrier")
                if i in gaps and not (k < 7 and mb == CHK and opt.chain and i == 0):
                    rem = len([g_ for g_ in gaps if g_ >= i])
                    take = (len(side) + rem - 1) // rem
                    for _ in range(take):
                        kind, r = side.pop(0)
                        ldsop(*r)
            assert not side
    stamp(2, vt[0], vt[1])
    a("s_nop 7")
    Zr = [vt[0], vt[2]]
    for nb in range(2):
        y, x2 = vt[2 * nb], vt[2 * nb + 1]
        a(f"v_mov_b32 v{y}, v{Q[nb]}")
    a("s_nop 1")
    for nb in range(2):
        y, x2 = vt[2 * nb], vt[2 * nb + 1]
        a(f"v_permlane16_swap_b32 v{Q[nb]}, v{y}")
    a("s_nop 1")
    for nb in range(2):
        y, x2 = vt[2 * nb], vt[2 * nb + 1]
        a(f"v_mov_b32 v{x2}, v{Q[nb]}")
    a("s_nop 1")
    for nb in range(2):
        y, x2 = vt[2 * nb], vt[2 * nb + 1]
        a(f"v_permlane32_swap_b32 v{Q[nb]}, v{x2}")
    a("s_nop 1")
    for nb in range(2):
        y, x2 = vt[2 * nb], vt[2 * nb + 1]
        a(f"v_cndmask_b32 v{y}, v{y}, v{x2}, s[{sMaskG1}:{sMaskG1+1}]")
    SA = [[192, 196], [200, 204]]
    for nb in range(2):
        p, q = P[nb], Q[nb]
        for r in range(0, 30, 2):
            a(f"v_pk_add_f32 v[{p+r}:{p+r+1}], v[{p+r}:{p+r+1}], v[{q+r+2}:{q+r+3}]")
        a(f"v_add_f32 v{p+30}, v{p+30}, v{q+1}")
        a(f"v_add_f32 v{p+31}, v{p+31}, v{Zr[nb]}")
        a(f"v_cndmask_b32 v{p+31}, v{p+31}, 0, s[{sMask3}:{sMask3+1}]")
        a(f"v_cndmask_b32 v{p+29}, v{p+29}, 0, s[{sMaskLast}:{sMaskLast+1}]")
        a(f"v_cndmask_b32 v{p+27}, v{p+27}, 0, s[{sMaskLast}:{sMaskLast+1}]")
        s1, s2 = SA[nb]
        a(f"v_pk_add_f32 v[{s1}:{s1+1}], v[{p}:{p+1}], v[{p+2}:{p+3}]")
        a(f"v_pk_add_f32 v[{s1+2}:{s1+3}], v[{p+4}:{p+5}], v[{p+6}:{p+7}]")
        a(f"v_pk_mul_f32 v[{s2}:{s2+1}], v[{p}:{p+1}], v[{p}:{p+1}]")
        a(f"v_pk_mul_f32 v[{s2+2}:{s2+3}], v[{p+2}:{p+3}], v[{p+2}:{p+3}]")
        for r in range(4, 32, 2):
            o = 2 * ((r >> 1) & 1)
            x = f"v[{p+r}:{p+r+1}]"
            a(f"v_pk_fma_f32 v[{s2+o}:{s2+o+1}], {x}, {x}, v[{s2+o}:{s2+o+1}]")
            if r >= 8:
                a(f"v_pk_add_f32 v[{s1+o}:{s1+o+1}], v[{s1+o}:{s1+o+1}], {x}")
    for nb in range(2):
        for st in range(2):
            s = SA[nb][st]
            a(f"v_pk_add_f32 v[{s}:{s+1}], v[{s}:{s+1}], v[{s+2}:{s+3}]")
    for nb in range(2):
        for st in range(2):
            s = SA[nb][st]
            a(f"v_add_f32 v{s}, v{s}, v{s+1}")

    def reduce4(v0_, v1_, v2_, v3_):
        a("s_nop 1")
        a(f"v_permlane16_swap_b32 v{v0_}, v{v1_}")
        a(f"v_permlane16_swap_b32 v{v2_}, v{v3_}")
        a("s_nop 1")
        a(f"v_add_f32 v{v0_}, v{v0_}, v{v1_}")
        a(f"v_add_f32 v{v2_}, v{v2_}, v{v3_}")
        a("s_nop 1")
        a(f"v_permlane32_swap_b32 v{v0_}, v{v2_}")
        a("s_nop 1")
        a(f"v_add_f32 v{v0_}, v{v0_}, v{v2_}")

    reduce4(SA[0][0], SA[1][0], SA[0][1], SA[1][1])
    S1 = SA[0][0]
    a(f"v_cmp_eq_u32 vcc, -1, v{S1}")
    a(f"v_mov_b32 v{S1+1}, 0x7fc00000")
    a("s_nop 0")
    a(f"v_cndmask_b32 v{S1}, v{S1}, v{S1+1}, vcc")
    a(f"buffer_store_dword v{S1}, v{vSl}, s[{SWS}:{SWS+3}], 0 offen sc1")
    stamp(3, vt[0], vt[1])
    trace("pub")
    trace_dump(1)
    a("s_barrier")
    PL = [128 + 4 * m for m in range(16)]

    def poll_load(m):
        vo = vPo15 if m == 15 else vPo
        return f"buffer_load_dwordx4 v[{PL[m]}:{PL[m]+3}], v{vo}, s[{SWS}:{SWS+3}], s{sPoll+(m>>2)} offen offset:{(m&3)*1024} sc1"

    def t_writes():
        for nb in range(2):
            for r in range(0, 32, 2):
                o0 = (r >> 1) * 2
                a(f"ds_write2st64_b32 v{vT[nb]}, v{P[nb]+r}, v{P[nb]+r+1} offset0:{o0} offset1:{o0+32}")

    if opt.twoph:
        a(f"s_bfe_u32 s{sTmp}, s2, 0x30004")
        a(f"s_lshl_b32 s{sTmp}, s{sTmp}, 10")
        a(f"s_add_u32 s{sTmp}, s{sTmp}, s{sSlot}")
        a(f"s_add_u32 s{sTmp2}, s{sTmp}, 8192")
        a(f"buffer_load_dwordx4 v[{PL[0]}:{PL[0]+3}], v{vPo}, s[{SWS}:{SWS+3}], s{sTmp} offen sc1")
        a(f"buffer_load_dwordx4 v[{PL[1]}:{PL[1]+3}], v{vPo}, s[{SWS}:{SWS+3}], s{sTmp2} offen sc1")
        t_writes()
        tread_setup()
        a("s_waitcnt lgkmcnt(0)")
        a("s_barrier")
        tread_issue()
        if opt.twoph == 2:
            a("s_waitcnt vmcnt(0)")
        for m in range(16):
            a(poll_load(m))
    else:
        if opt.pollfirst == 1:
            for m in range(16):
                a(poll_load(m))
            t_writes()
        elif opt.pollfirst == 0:
            t_writes()
            for m in range(16):
                a(poll_load(m))
        else:
            t_writes()
        tread_setup()
        a("s_waitcnt lgkmcnt(0)")
        if opt.pollfirst == 2:
            for m in range(16):
                a(poll_load(m))
        a("s_barrier")
        if opt.pollfirst == 3:
            for m in range(16):
                a(poll_load(m))
        tread_issue()
        if opt.pollfirst == 4:
            a("s_waitcnt lgkmcnt(0)")
            for m in range(16):
                a(poll_load(m))
    PM = [4 + 2 * i for i in range(12)] + [40 + 2 * i for i in range(4)]
    a(f"s_mov_b32 s{sSpin}, 0")
    a("s_waitcnt vmcnt(0)")
    for m in range(16):
        a(f"v_max3_u32 v{vt[m&3]}, v{PL[m]}, v{PL[m]+1}, v{PL[m]+2}")
        a(f"v_max_u32 v{vt[m&3]}, v{vt[m&3]}, v{PL[m]+3}")
        a(f"v_cmp_eq_u32 s[{PM[m]}:{PM[m]+1}], -1, v{vt[m&3]}")
    a.label("L_poll")
    a(f"s_or_b64 s[{sAny}:{sAny+1}], s[{PM[0]}:{PM[0]+1}], s[{PM[1]}:{PM[1]+1}]")
    for m in range(2, 16):
        a(f"s_or_b64 s[{sAny}:{sAny+1}], s[{sAny}:{sAny+1}], s[{PM[m]}:{PM[m]+1}]")
    a("s_cbranch_scc0 L_pdone")
    a(f"s_add_u32 s{sSpin}, s{sSpin}, 1")
    a(f"s_cmp_gt_u32 s{sSpin}, {SPIN_MAX}")
    a("s_cbranch_scc1 L_pdone")
    for m in range(16):
        lab = a.newlab("L_pl")
        a(f"s_mov_b64 exec, s[{PM[m]}:{PM[m]+1}]")
        a(f"s_cbranch_execz {lab}")
        a(poll_load(m))
        a.label(lab)
    a("s_waitcnt vmcnt(0)")
    for m in range(16):
        lab = a.newlab("L_pc")
        a(f"s_mov_b64 exec, s[{PM[m]}:{PM[m]+1}]")
        a(f"s_cbranch_execz {lab}")
        a(f"v_max3_u32 v{vt[0]}, v{PL[m]}, v{PL[m]+1}, v{PL[m]+2}")
        a(f"v_max_u32 v{vt[0]}, v{vt[0]}, v{PL[m]+3}")
        a(f"v_cmp_eq_u32 s[{PM[m]}:{PM[m]+1}], -1, v{vt[0]}")
        a.label(lab)
    a("s_mov_b64 exec, -1")
    a("s_branch L_poll")
    a.label("L_pdone")
    a("s_mov_b64 exec, -1")
    stamp(4, vt[0], vt[1])
    step = 1
    while step < 16:
        for m in range(0, 16, 2 * step):
            for hh in range(2):
                d, s_ = PL[m] + 2 * hh, PL[m + step] + 2 * hh
                a(f"v_pk_add_f32 v[{d}:{d+1}], v[{d}:{d+1}], v[{s_}:{s_+1}]")
        step *= 2
    v0_, v1_, v2_, v3_ = PL[0], PL[0] + 1, PL[0] + 2, PL[0] + 3
    reduce4(v0_, v1_, v2_, v3_)
    a("s_nop 1")
    a(f"v_mov_b32_dpp v{v1_}, v{v0_} row_ror:8 row_mask:0xf bank_mask:0xf")
    c1 = -2.0 * math.sqrt(2.0 / math.pi) * math.log2(math.e)
    c2 = c1 * 0.044715
    sc = -((-c2) ** (1.0 / 3.0))
    a(f"v_mul_f32 v{v0_}, {hex(f2u(1.0/L_OUT))}, v{v0_}")
    a(f"v_mul_f32 v{v1_}, {hex(f2u(1.0/L_OUT))}, v{v1_}")
    a(f"v_fma_f32 v{v1_}, -v{v0_}, v{v0_}, v{v1_}")
    a(f"v_max_f32 v{v1_}, 0, v{v1_}")
    a(f"v_add_f32 v{v1_}, {hex(f2u(1e-5))}, v{v1_}")
    a(f"v_rsq_f32 v{v1_}, v{v1_}")
    a(f"v_lshlrev_b32 v{vG}, 16, v{vG}")
    a(f"v_lshlrev_b32 v{vBe}, 16, v{vBe}")
    a(f"v_mul_f32 v{vG}, {hex(f2u(sc))}, v{vG}")
    a(f"v_mul_f32 v{vBe}, {hex(f2u(sc))}, v{vBe}")
    a(f"v_mul_f32 v{v1_}, v{v1_}, v{vG}")
    a(f"v_fma_f32 v{v0_}, -v{v0_}, v{v1_}, v{vBe}")
    a(f"s_mov_b32 s{sTmp}, 0x00ff00ff")
    a(f"s_mov_b32 exec_lo, s{sTmp}")
    a(f"s_mov_b32 exec_hi, s{sTmp}")
    a(f"ds_write2_b32 v{vPar}, v{v1_}, v{v0_} offset0:0 offset1:128")
    a("s_mov_b64 exec, -1")
    a("s_waitcnt lgkmcnt(0)")
    a("s_barrier")

    a.label("L_epi")
    SCL, SHF = 16, 24
    a(f"ds_read_b128 v[{SCL}:{SCL+3}], v10")
    a(f"ds_read_b128 v[{SCL+4}:{SCL+7}], v10 offset:16")
    a(f"ds_read_b128 v[{SHF}:{SHF+3}], v10 offset:512")
    a(f"ds_read_b128 v[{SHF+4}:{SHF+7}], v10 offset:528")
    k1 = c1 / sc
    a(f"s_mov_b32 s{sK}, {hex(f2u(k1))}")
    a(f"s_mov_b32 s{sK+1}, {hex(f2u(k1))}")
    a(f"s_mov_b32 s{sK+2}, {hex(f2u(sc))}")
    a(f"s_mov_b32 s{sK+3}, {hex(f2u(sc))}")
    a("s_waitcnt lgkmcnt(0)")
    W_, O_ = 32, 48
    for i in range(4):
        h = H[i]
        w_ = W_ + 8 * (i & 1)
        o_ = O_ + 4 * (i & 1)
        for p in range(4):
            a(f"v_pk_fma_f32 v[{h+2*p}:{h+2*p+1}], v[{h+2*p}:{h+2*p+1}], v[{SCL+2*p}:{SCL+2*p+1}], v[{SHF+2*p}:{SHF+2*p+1}]")
        for p in range(4):
            a(f"v_pk_fma_f32 v[{w_+2*p}:{w_+2*p+1}], v[{h+2*p}:{h+2*p+1}], v[{h+2*p}:{h+2*p+1}], s[{sK}:{sK+1}]")
        for p in range(4):
            a(f"v_pk_mul_f32 v[{w_+2*p}:{w_+2*p+1}], v[{w_+2*p}:{w_+2*p+1}], v[{h+2*p}:{h+2*p+1}]")
        for e in range(8):
            a(f"v_exp_f32 v{w_+e}, v{w_+e}")
        for p in range(4):
            a(f"v_pk_fma_f32 v[{w_+2*p}:{w_+2*p+1}], v[{w_+2*p}:{w_+2*p+1}], s[{sK+2}:{sK+3}], s[{sK+2}:{sK+3}]")
        for e in range(8):
            a(f"v_rcp_f32 v{w_+e}, v{w_+e}")
        for p in range(4):
            a(f"v_pk_mul_f32 v[{w_+2*p}:{w_+2*p+1}], v[{w_+2*p}:{w_+2*p+1}], v[{h+2*p}:{h+2*p+1}]")
        for p in range(4):
            a(f"v_cvt_pk_bf16_f32 v{o_+p}, v{w_+2*p}, v{w_+2*p+1}")
        vo = 9 if i == 3 else 8
        a(f"buffer_store_dwordx4 v[{o_}:{o_+3}], v{vo}, s[{SO}:{SO+3}], s{sOutB+i} offen{ONT}")
    if STAMP:
        a("v_lshrrev_b32 v60, 6, v0")
        a(f"v_cmp_eq_u32 vcc, {max(opt.stampw,0)}, v60")
        a("s_cbranch_vccz L_end")
        stamp(5)
        a("s_waitcnt vmcnt(0)")
        stamp(6)
        stamp_dump("0x3fff")
    a.label("L_end")
    a("s_endpgm")
    a.label("L_codeend")

    hdr = open("cdna_kernels/%s.s.ref" % NAME).read().split("\n")
    head = []
    for ln in hdr:
        if ln.startswith("; @launch"):
            head.append("; @launch grid=(254,1,1) block=(512,1,1) lds=163840")
            break
        head.append(ln)
    out = "\n".join(head) + "\n"
    out += f""".amdgcn_target "amdgcn-amd-amdhsa--gfx950"
.text
.globl {NAME}_kernel
.p2align 8
.type {NAME}_kernel,@function
{NAME}_kernel:
"""
    out += a.text()
    out += f""".section .rodata,"a"
.p2align 6
.amdhsa_kernel {NAME}_kernel
  .amdhsa_next_free_vgpr 256
  .amdhsa_next_free_sgpr 102
  .amdhsa_accum_offset 256
  .amdhsa_group_segment_fixed_size 0
  .amdhsa_kernarg_size 56
  .amdhsa_user_sgpr_count 2
  .amdhsa_user_sgpr_kernarg_segment_ptr 1
  .amdhsa_system_sgpr_workgroup_id_x 1
.end_amdhsa_kernel
"""
    return out


def parse(argv=None):
    ap = argparse.ArgumentParser()
    ap.add_argument("-o", default="cdna_kernels/%s.s" % NAME)
    ap.add_argument("--stamp", type=int, default=0)
    ap.add_argument("--skipdma", type=int, default=0)
    ap.add_argument("--sleep", type=int, default=1)
    ap.add_argument("--nomfma", type=int, default=0)
    ap.add_argument("--rot", type=int, default=1)
    ap.add_argument("--freerun", type=int, default=0)
    ap.add_argument("--trace", type=int, default=0)
    ap.add_argument("--nononce", type=int, default=0)
    ap.add_argument("--xpol", default="nt,nt")
    ap.add_argument("--nown", type=int, default=4)
    ap.add_argument("--nocheck", type=int, default=0)
    ap.add_argument("--prio", type=int, default=0)
    ap.add_argument("--lprio", type=int, default=0)
    ap.add_argument("--bsp", type=int, default=5)
    ap.add_argument("--esleep", type=int, default=1)
    ap.add_argument("--stampw", type=int, default=-1)
    ap.add_argument("--fl_ahead", type=int, default=2)
    ap.add_argument("--ntry", default="16,30,44")
    ap.add_argument("--nowait", type=int, default=0)
    ap.add_argument("--nodone", type=int, default=0)
    ap.add_argument("--ldvgpr", type=int, default=0)
    ap.add_argument("--nopub", type=int, default=0)
    ap.add_argument("--noa", type=int, default=0)
    ap.add_argument("--nob", type=int, default=0)
    ap.add_argument("--fixop", type=int, default=0)
    ap.add_argument("--lregion", type=int, default=-1)
    ap.add_argument("--caps", default="20,10,12")
    ap.add_argument("--ldelay", type=int, default=0)
    ap.add_argument("--chain", type=int, default=0)
    ap.add_argument("--twoph", type=int, default=0)
    ap.add_argument("--xnt", type=int, default=1)
    ap.add_argument("--wpf", type=int, default=1)
    ap.add_argument("--wpf_pos", type=int, default=0)
    ap.add_argument("--cpf", type=int, default=10)
    ap.add_argument("--ostore", default="nt")
    ap.add_argument("--order", default="H0 W0 L0 P H1+W1 H2+W2 L1 H3+W3 L2 W4 W5 L3 W6 W7")
    ap.add_argument("--depth", type=int, default=6)
    ap.add_argument("--throttle", type=int, default=0)
    ap.add_argument("--pd", type=int, default=3)
    ap.add_argument("--chk", type=int, default=2)
    ap.add_argument("--pollfirst", type=int, default=1)
    o = ap.parse_args(argv)
    if o.ostore:
        o.ostore = " " + o.ostore.replace("+", " ")
    return o


if __name__ == "__main__":
    o = parse()
    open(o.o, "w").write(gen(o))
```

```python
import sys, math, struct, argparse

NAME = "standalone__self_sup_conv_stem_wavlm__speech"
L_OUT = 7999
TR = 127
NTILE = 63
XB_BATCH = 16000 * 512
X_BYTES = 2 * XB_BATCH
W_BYTES = 3 * 256 * 256 * 2
OUT_BYTES = 2 * L_OUT * 512
FLG = 163840
PAR = 65536
RDY = 0x40000
SPIN_MAX = 200000


def f2u(f):
    return struct.unpack("<I", struct.pack("<f", f))[0]


class Asm:
    def __init__(self):
        self.lines = []
        self.lab = 0

    def __call__(self, s):
        self.lines.append("    " + s)

    def label(self, n):
        self.lines.append(n + ":")

    def newlab(self, p="L"):
        self.lab += 1
        return f"{p}_{self.lab}"

    def c(self, s):
        self.lines.append("    ; " + s)

    def text(self):
        return "\n".join(self.lines) + "\n"


def xslot(kind, j):
    return 2 * (j % 3) + (0 if kind == "E" else 1)


def build_stream(spec):
    def X(which, j):
        return [("x", which, j, qq) for qq in range(4)]

    def Wu(u):
        return [("w", u, 0), ("w", u, 1)]

    def one(t):
        if t == "P":
            return [("pf",)]
        if t == "F":
            return [("fl",)]
        n = int(t[1:])
        if t[0] == "H":
            return X(0, n)
        if t[0] == "L":
            return X(1, n)
        if t[0] == "W":
            return Wu(3 * n) + Wu(3 * n + 1) + Wu(3 * n + 2)
        if t[0] == "U":
            return Wu(n)
        raise ValueError(t)

    def mix(a, b):
        out = []
        ia = ib = 0
        while ia < len(a) or ib < len(b):
            if ib >= len(b) or (ia < len(a) and ia * len(b) <= ib * len(a)):
                out.append(a[ia]); ia += 1
            else:
                out.append(b[ib]); ib += 1
        return out

    S = []
    for tok in spec.split():
        parts = [sum((one(t) for t in p.split(",")), []) for p in tok.split("+")]
        cur = parts[0]
        for p in parts[1:]:
            cur = mix(cur, p)
        S += cur
    assert len([t for t in S if t[0] not in ("pf", "fl")]) == 80 and len(set(S)) == len(S), (len(S), spec)
    return S


def gen(opt):
    a = Asm()
    STAMP = opt.stamp
    XPOL = [(" " + p.replace("+", " ")) if p != "-" else "" for p in opt.xpol.split(",")]
    ONT = opt.ostore
    D = opt.depth
    NOWN = opt.nown
    PART = NOWN * 16384
    RING = PART + 32768
    NSLOT = (FLG - RING) // 8192

    SX, SW, SO, SWS, SDBG, SG, SB = 20, 24, 28, 32, 36, 40, 44
    sT, sC, sBt, sTt, sGrp, sWave, sTmp, sTmp2 = 48, 49, 50, 51, 52, 53, 54, 55
    sXb0, sXb1, sXl0, sXl1, sWb, sWl, sOff = 56, 57, 58, 59, 60, 61, 62
    sLvl = 63
    sMask3, sMaskLast, sMaskG1 = 64, 66, 68
    sSlot = 70
    sPoll = 71
    sOutB = 75
    sNv = 79
    sK = 80
    sSt = 84
    sStB = 86
    sSpin = 87
    sEx = 88
    sPc = 90
    sAny = 92
    sPub = 93
    sSent, sFlagged = 90, 91
    sPM = 4

    def srd(d, p, nbytes):
        a(f"s_mov_b32 s{d}, s{p}")
        a(f"s_and_b32 s{d+1}, s{p+1}, 0xffff")
        a(f"s_mov_b32 s{d+2}, {nbytes}")
        a(f"s_mov_b32 s{d+3}, 0x20000")

    def stamp(idx, vt0=None, vt1=None):
        if not STAMP:
            return
        a(f"s_memrealtime s[{sSt}:{sSt+1}]")
        a("s_memtime s[98:99]")
        a("s_waitcnt lgkmcnt(0)")
        a(f"v_writelane_b32 v63, s{sSt}, {2*idx}")
        a(f"v_writelane_b32 v63, s98, {2*idx+1}")

    def stamp_dump(mask):
        a(f"s_mov_b64 exec, {mask}")
        a("v_lshlrev_b32 v60, 2, v2")
        a(f"buffer_store_dword v63, v60, s[{SWS}:{SWS+3}], s{sStB} offen")
        a("s_mov_b64 exec, -1")

    trc = {"n": 0, "names": []}

    def trace(name):
        if not opt.trace:
            return
        if trc["n"] >= 128:
            return
        a("s_memtime s[100:101]")
        a("s_waitcnt lgkmcnt(0)")
        a(f"v_writelane_b32 v{62 if trc['n'] < 64 else 61}, s100, {trc['n'] % 64}")
        trc["names"].append(name)
        trc["n"] += 1

    def trace_dump(half):
        if not opt.trace:
            return
        lab = a.newlab("L_td")
        a(f"s_cmp_lg_u32 s{sWave}, 0")
        a(f"s_cbranch_scc1 {lab}")
        a(f"s_lshl_b32 s{sTmp}, s2, 10")
        a(f"s_add_u32 s{sTmp}, s{sTmp}, {0x180000 + half*512}")
        a("v_lshlrev_b32 v63, 2, v2")
        a(f"buffer_store_dword v62, v63, s[{SWS}:{SWS+3}], s{sTmp} offen")
        a(f"buffer_store_dword v61, v63, s[{SWS}:{SWS+3}], s{sTmp} offen offset:256")
        a.label(lab)
        sys.stderr.write(f"TRACE{half}: " + ",".join(trc["names"]) + "\n")
        trc["n"] = 0
        trc["names"] = []

    if STAMP:
        a("s_memrealtime s[94:95]")
        a("s_memtime s[96:97]")
    a("s_load_dwordx8 s[4:11], s[0:1], 0")
    a("s_load_dwordx4 s[12:15], s[0:1], 32")
    a("s_load_dwordx2 s[16:17], s[0:1], 48")
    a(f"s_lshr_b32 s{sTmp}, s2, 4")
    a(f"s_lshl_b32 s{sTmp}, s{sTmp}, 3")
    a(f"s_and_b32 s{sTmp2}, s2, 7")
    a(f"s_add_u32 s{sT}, s{sTmp}, s{sTmp2}")
    a(f"s_cmp_ge_u32 s{sT}, {2*NTILE}")
    a("s_cbranch_scc1 L_end")
    a("v_lshrrev_b32 v1, 6, v0")
    a("v_and_b32 v2, 63, v0")
    a(f"v_readfirstlane_b32 s{sWave}, v1")
    a(f"s_bfe_u32 s{sC}, s2, 0x10003")
    a(f"s_cmp_ge_u32 s{sT}, {NTILE}")
    a(f"s_cselect_b32 s{sBt}, 1, 0")
    a(f"s_mul_i32 s{sTmp}, s{sBt}, {NTILE}")
    a(f"s_sub_u32 s{sTt}, s{sT}, s{sTmp}")
    a(f"s_cmp_lt_u32 s{sWave}, 4")
    a("s_cbranch_scc1 L_compute")

    def common_late():
        a(f"s_lshl_b32 s{sGrp}, s{sBt}, 1")
        a(f"s_add_u32 s{sGrp}, s{sGrp}, s{sC}")
        a(f"s_cmp_eq_u32 s{sTt}, {NTILE-1}")
        a(f"s_cselect_b32 s{sNv}, {TR - (L_OUT - TR*(NTILE-1))}, 0")
        a(f"s_sub_u32 s{sNv}, {TR}, s{sNv}")
        a(f"s_lshl_b32 s{sStB}, s2, 8")
        a(f"s_add_u32 s{sStB}, s{sStB}, 0x100000")
        srd(SO, 12, OUT_BYTES)
        srd(SWS, 16, 0x200000 if STAMP else 0x48000)
        srd(SDBG, 14, 256)
        a(f"s_mul_i32 s{sTmp}, s{sBt}, {L_OUT}")
        a(f"s_mul_i32 s{sTmp2}, s{sTt}, {TR}")
        a(f"s_add_u32 s{sTmp}, s{sTmp}, s{sTmp2}")
        a(f"s_lshl_b32 s{sOutB}, s{sTmp}, 9")
        for i in range(1, 4):
            a(f"s_add_u32 s{sOutB+i}, s{sOutB}, {i*16384}")

    a(f"s_sub_u32 s{sWave}, s{sWave}, 4")
    if opt.lprio:
        a(f"s_setprio {opt.lprio}")
    a("v_lshrrev_b32 v5, 3, v2")
    a("v_lshlrev_b32 v5, 10, v5")
    a(f"s_lshl_b32 s{sTmp}, s{sWave}, 1")
    a("v_and_b32 v6, 7, v2")
    a(f"v_xor_b32 v6, s{sTmp}, v6")
    a("v_lshl_add_u32 v3, v6, 4, v5")
    a("v_xor_b32 v4, 16, v3")
    a("v_lshrrev_b32 v6, 4, v2")
    a(f"s_lshr_b32 s{sTmp}, s{sWave}, 1")
    a(f"s_lshl_b32 s{sTmp}, s{sTmp}, 2")
    a(f"v_or_b32 v7, s{sTmp}, v6")
    a("v_bfe_u32 v8, v2, 1, 3")
    a("v_xor_b32 v7, v7, v8")
    a("v_lshlrev_b32 v5, 9, v6")
    a("v_lshl_add_u32 v5, v7, 5, v5")
    a("v_and_b32 v7, 1, v2")
    a("v_lshl_add_u32 v5, v7, 4, v5")
    a(f"s_bfe_u32 s{sTmp}, s2, 0x50003")
    a(f"s_lshl_b32 s{sTmp}, s{sTmp}, 2")
    a(f"s_add_u32 s{sTmp}, s{sTmp}, s{sWave}")
    a(f"s_mul_i32 s{sTmp}, s{sTmp}, 3072")
    a("v_min_u32 v6, 47, v2")
    a(f"v_lshl_add_u32 v6, v6, 6, s{sTmp}")
    a(f"s_mul_i32 s{sXb0}, s{sBt}, {XB_BATCH}")
    a(f"s_mul_i32 s{sTmp}, s{sTt}, {TR*1024}")
    a(f"s_add_u32 s{sXb0}, s{sXb0}, s{sTmp}")
    a(f"s_lshl_b32 s{sTmp}, s{sWave}, 15")
    a(f"s_add_u32 s{sXb0}, s{sXb0}, s{sTmp}")
    a(f"s_lshl_b32 s{sTmp}, s{sC}, 9")
    a(f"s_xor_b32 s{sTmp2}, s{sTmp}, 512")
    a(f"s_add_u32 s{sXb1}, s{sXb0}, s{sTmp2}")
    a(f"s_add_u32 s{sXb0}, s{sXb0}, s{sTmp}")
    a(f"s_lshl_b32 s{sXl0}, s{sWave}, 12")
    a(f"s_add_u32 s{sXl1}, s{sXl0}, {PART}")
    a(f"s_lshl_b32 s{sWb}, s{sWave}, 11")
    a(f"s_lshl_b32 s{sTmp}, s{sC}, 8")
    a(f"s_add_u32 s{sWb}, s{sWb}, s{sTmp}")
    a(f"s_lshl_b32 s{sWl}, s{sWave}, 10")
    a(f"s_add_u32 s{sWl}, s{sWl}, {RING}")
    RX0, RX1, RW = [64, 65, 66, 67], [71, 72, 73, 74], [80, 81, 82, 83]
    for j in range(4):
        if opt.rot:
            a(f"s_lshr_b32 s{sTmp}, s2, 4")
            a(f"s_add_u32 s{sTmp}, s{sTmp}, {j}")
            a(f"s_and_b32 s{sTmp}, s{sTmp}, 3")
        else:
            a(f"s_mov_b32 s{sTmp}, {j}")
        a(f"s_lshl_b32 s{sTmp2}, s{sTmp}, 7")
        a(f"s_add_u32 s{RX0[j]}, s{sXb0}, s{sTmp2}")
        a(f"s_add_u32 s{RX1[j]}, s{sXb1}, s{sTmp2}")
        a(f"s_lshl_b32 s{sTmp2}, s{sTmp}, 15")
        a(f"s_add_u32 s{RW[j]}, s{sWb}, s{sTmp2}")
    a("s_waitcnt lgkmcnt(0)")
    if STAMP >= 2:
        stamp(8)
    srd(SX, 4, X_BYTES)
    srd(SW, 6, W_BYTES)
    trace("start")

    specs = opt.order.split("/")
    ncls = len(specs)
    if ncls > 1:
        a(f"s_and_b32 s{sTmp}, s{sT}, {ncls//2 - 1}")
        a(f"s_lshl_b32 s{sTmp}, s{sTmp}, 1")
        a(f"s_add_u32 s{sTmp}, s{sTmp}, s{sC}")
        for ci in range(1, ncls):
            a(f"s_cmp_eq_u32 s{sTmp}, {ci}")
            a(f"s_cbranch_scc1 L_cls{ci}")

    def lproto(cnt, blocking):
        lab, top, again = a.newlab("L_pt"), a.newlab("L_ptt"), a.newlab("L_pta")
        a(f"s_cmp_lg_u32 s{sFlagged}, 0")
        a(f"s_cbranch_scc1 {lab}")
        if blocking:
            a(f"s_mov_b32 s{sSpin}, 0")
        a.label(top)
        a(f"s_waitcnt vmcnt({cnt})")
        a(f"v_readfirstlane_b32 s{sTmp}, v26")
        a(f"s_cmp_eq_u32 s{sTmp}, 0")
        a(f"s_cbranch_scc1 {again}")
        a(f"s_lshl_b32 s{sTmp}, s{sGrp}, 6")
        a(f"s_add_u32 s{sTmp}, s{sTmp}, s{sTt}")
        a(f"s_lshl_b32 s{sTmp}, s{sTmp}, 7")
        a(f"s_add_u32 s{sTmp}, s{sTmp}, {RDY}")
        a("s_mov_b64 exec, 1")
        a(f"buffer_store_dwordx2 v[26:27], off, s[{SWS}:{SWS+3}], s{sTmp} sc1")
        a("s_mov_b64 exec, -1")
        a(f"s_mov_b32 s{sFlagged}, 1")
        a(f"s_branch {lab}")
        a.label(again)
        a(f"buffer_load_dwordx2 v[26:27], off, s[{SDBG}:{SDBG+3}], 0 sc1")
        if blocking:
            a(f"s_add_u32 s{sSpin}, s{sSpin}, 1")
            a(f"s_cmp_le_u32 s{sSpin}, {SPIN_MAX}")
            a(f"s_cbranch_scc1 {top}")
        a.label(lab)

    def emit_loader(spec):
        stream = build_stream(spec)
        if opt.skipdma:
            stream = [it for i, it in enumerate(stream) if i < 16 or not (
                opt.skipdma == 3 or (opt.skipdma == 1 and it[0] == "x") or (opt.skipdma == 2 and it[0] == "w"))]

        def earliest(it):
            if opt.freerun:
                return -2
            if it[0] == "w" and it[1] >= NSLOT:
                return (it[1] - NSLOT) // 3
            if it[0] == "x":
                ns = NOWN if it[1] == 0 else 2
                if it[2] >= ns:
                    return 2 * (it[2] - ns) + 2
            return -2

        def req(k):
            r = [("w", u, h) for u in range(3 * k, 3 * k + 3) for h in range(2)]
            r += [("x", wh, k // 2, qq) for wh in range(2) for qq in range(4)]
            return [it for it in r if it in stream]

        caps = [int(v) for v in opt.caps.split(",")]
        issued = []
        pos = 0

        def issue(it):
            i = len(issued)
            if it[0] == "x":
                _, wh, j, qq = it
                sb, sl = (RX0[j], sXl0) if wh == 0 else (RX1[j], sXl1)
                a(f"s_add_u32 m0, s{sl}, {((j % NOWN) if wh == 0 else (j & 1))*16384+qq*1024}")
                a(f"s_add_u32 s{sOff}, s{sb}, {qq*8192}")
                a(f"buffer_load_dwordx4 v{3+(qq>>1)}, s[{SX}:{SX+3}], s{sOff} offen{XPOL[wh]} lds")
            elif it[0] == "w":
                _, u, h = it
                k, tap = u // 3, u % 3
                a(f"s_add_u32 m0, s{sWl}, {(u%NSLOT)*8192+h*4096}")
                a(f"s_add_u32 s{sOff}, s{RW[k//2]}, {(tap*256+32*(k%2)+16*h)*512}")
                a(f"buffer_load_dwordx4 v5, s[{SW}:{SW+3}], s{sOff} offen lds")
            else:
                a(f"buffer_load_dword v8, v6, s[{SW}:{SW+3}], 0 offen")
            issued.append(it)

        for iv in range(-2, 7):
            nxt_req = req(iv + 2)
            cap = caps[min(iv + 2, len(caps) - 1)]
            cnt = 0
            if iv >= 0 and opt.ldelay:
                a(f"s_sleep {opt.ldelay}")
            while pos < len(stream) and earliest(stream[pos]) <= iv and (cnt < cap or any(r not in issued for r in nxt_req)):
                issue(stream[pos])
                pos += 1
                cnt += 1
                if iv == -2 and cnt == 14:
                    common_late()
                if iv == -2 and STAMP == 3 and cnt == 6:
                    stamp(9)
                    a("s_waitcnt vmcnt(5)")
                    stamp(10)
                    a("s_waitcnt vmcnt(0)")
                    stamp(11)
            if iv == -2 and STAMP == 2:
                stamp(9)
                a(f"s_waitcnt vmcnt({cnt-1})")
                stamp(10)
                a(f"s_waitcnt vmcnt({cnt-5})")
                stamp(11)
            if iv == -1:
                lab = a.newlab("L_sn")
                a(f"s_cmp_lg_u32 s{sWave}, 3")
                a(f"s_cselect_b32 s{sFlagged}, 1, 0")
                a(f"s_cbranch_scc1 {lab}")
                a(f"s_lshl_b32 s{sTmp}, s{sGrp}, 16")
                a(f"s_lshl_b32 s{sTmp2}, s{sTt}, 8")
                a(f"s_add_u32 s{sTmp}, s{sTmp}, s{sTmp2}")
                a("v_lshrrev_b32 v24, 4, v2")
                a("v_lshlrev_b32 v24, 14, v24")
                a("v_and_b32 v25, 15, v2")
                a("v_lshl_add_u32 v24, v25, 4, v24")
                for r in range(28, 32):
                    a(f"v_mov_b32 v{r}, -1")
                a(f"buffer_store_dwordx4 v[28:31], v24, s[{SWS}:{SWS+3}], s{sTmp} offen sc1")
                a(f"buffer_load_dwordx2 v[26:27], off, s[{SDBG}:{SDBG+3}], 0 sc1")
                a.label(lab)
                a("v_min_u32 v18, 62, v2")
                a(f"s_lshl_b32 s{sTmp}, s{sGrp}, 13")
                a(f"s_add_u32 s{sTmp}, s{sTmp}, {RDY}")
                a(f"v_lshl_add_u32 v18, v18, 7, s{sTmp}")
            if iv in (0, 1, 2):
                lproto(cnt, False)
            if iv == 3:
                lproto(0, True) if False else lproto(cnt, False)
            if iv == 6:
                break
            for r in nxt_req:
                assert r in issued, (iv, r)
            if nxt_req:
                last = max(issued.index(r) for r in nxt_req)
                a(f"s_waitcnt vmcnt({min(63, len(issued) - 1 - last)})")
            a("s_barrier")
        assert pos == len(stream), (pos, len(stream))

    for ci, spec in enumerate(specs):
        a.label(f"L_cls{ci}")
        emit_loader(spec)
        if ci + 1 < ncls:
            a("s_branch L_ldone")
    a.label("L_ldone")
    if STAMP:
        stamp(7)
        stamp_dump("0xffc000")
    a(f"s_cmp_lg_u32 s{sWave}, 3")
    a("s_cbranch_scc1 L_cnt_ok")
    lproto(0, True)
    a(f"s_mov_b32 s{sSpin}, 0")
    a.label("L_cnt")
    a(f"buffer_load_dwordx2 v[16:17], v18, s[{SWS}:{SWS+3}], 0 offen sc1")
    a("s_waitcnt vmcnt(0)")
    a("v_cmp_ne_u64 vcc, v[16:17], v[26:27]")
    a("s_cbranch_vccz L_cnt_ok")
    a(f"s_add_u32 s{sSpin}, s{sSpin}, 1")
    a(f"s_cmp_gt_u32 s{sSpin}, {SPIN_MAX}")
    a("s_cbranch_scc1 L_cnt_ok")
    a("s_sleep 4")
    a("s_branch L_cnt")
    a.label("L_cnt_ok")
    H = [64 + 8 * i for i in range(4)]

    def tread_setup():
        a("v_and_b32 v3, 15, v0")
        a("v_lshrrev_b32 v4, 4, v0")
        a("v_lshlrev_b32 v5, 1, v3")
        a("v_lshrrev_b32 v6, 3, v3")
        a("v_xor_b32 v5, v5, v6")
        a("v_lshlrev_b32 v5, 4, v5")
        a("v_lshl_add_u32 v5, v4, 9, v5")
        a("v_xor_b32 v6, 16, v5")
        a(f"s_lshl_b32 s{sTmp}, s{sC}, 8")
        a(f"v_lshl_add_u32 v8, v4, 9, s{sTmp}")
        a("v_lshl_add_u32 v8, v3, 4, v8")
        a("v_add_u32 v4, 96, v4")
        a(f"v_cmp_gt_u32 vcc, s{sNv}, v4")
        a("v_mov_b32 v9, 0x7ff00000")
        a("v_lshlrev_b32 v10, 5, v3")
        a("v_cndmask_b32 v9, v9, v8, vcc")
        a(f"v_add_u32 v10, {PAR}, v10")

    def tread_issue():
        for i in range(4):
            a(f"ds_read_b128 v[{H[i]}:{H[i]+3}], v5 offset:{i*16384}")
            a(f"ds_read_b128 v[{H[i]+4}:{H[i]+7}], v6 offset:{i*16384}")

    a("s_waitcnt lgkmcnt(0)")
    tread_setup()
    a("s_barrier")
    a("s_barrier")
    tread_issue()
    a("s_barrier")
    a("s_branch L_epi")

    a.label("L_compute")
    if opt.prio:
        a(f"s_setprio {opt.prio}")
    P = [64, 96]
    Q = [128, 160]
    FB = [[192 + 24 * s + 4 * i for i in range(6)] for s in range(2)]
    NAG = 4
    FA = [[8 + 8 * g, 12 + 8 * g] for g in range(NAG)]
    vA = [[[40, 41], [42, 43]], [[248, 249], [250, 251]]]
    vA0 = 252
    sAo = [[56, 57, 58, 59], [60, 61, 62, 63]]
    vB = [44, 45]
    vSl, vG, vBe = 46, 47, 48
    vT = [49, 50]
    vFl, vDn, vPar = 51, 52, 53
    vPo, vPo15 = 54, 55
    vF = 56
    vt = [240 + i for i in range(8)]

    def code_prefetch():
        lab = a.newlab("L_ncp")
        a(f"s_cmp_lg_u32 s{sWave}, 3")
        a(f"s_cbranch_scc1 {lab}")
        a(f"s_getpc_b64 s[{sPc}:{sPc+1}]")
        a.label("L_pcref")
        a(f"s_sub_u32 s{sPc}, s{sPc}, L_pcref-{NAME}_kernel")
        a(f"s_subb_u32 s{sPc+1}, s{sPc+1}, 0")
        a(f"s_bfe_u32 s{sTmp}, s2, 0x50003")
        a(f"s_mul_i32 s{sTmp}, s{sTmp}, {opt.cpf*64}")
        a(f"v_min_u32 v3, {opt.cpf-1}, v2")
        a(f"v_lshl_add_u32 v3, v3, 6, s{sTmp}")
        a(f"v_min_u32 v3, L_codeend-{NAME}_kernel-4, v3")
        a(f"global_load_dword v61, v3, s[{sPc}:{sPc+1}]")
        a.label(lab)

    if opt.cpf:
        code_prefetch()
    a("v_bfe_u32 v3, v2, 2, 2")
    a("v_and_b32 v4, 1, v2")
    a("v_lshl_add_u32 v3, v3, 1, v4")
    a("v_bfe_u32 v4, v2, 1, 1")
    a("v_lshl_add_u32 v4, v3, 4, v4")
    a("v_lshrrev_b32 v5, 4, v2")
    a("v_xor_b32 v3, v3, v5")
    a("v_lshlrev_b32 v3, 4, v3")
    a(f"v_lshl_add_u32 v{vA0}, v4, 7, v3")
    a(f"s_cmp_eq_u32 s{sC}, 0")
    for jj in range(4):
        a(f"s_mov_b32 s{sTmp}, {(jj % NOWN)*16384}")
        a(f"s_mov_b32 s{sTmp2}, {PART+(jj&1)*16384}")
        a(f"s_cselect_b32 s{sAo[0][jj]}, s{sTmp}, s{sTmp2}")
        a(f"s_cselect_b32 s{sAo[1][jj]}, s{sTmp2}, s{sTmp}")

    def set_abase(jj):
        for e in range(2):
            a(f"v_add_u32 v{vA[jj&1][e][0]}, s{sAo[e][jj]}, v{vA0}")
            a(f"v_xor_b32 v{vA[jj&1][e][1]}, 64, v{vA[jj&1][e][0]}")

    set_abase(0)
    set_abase(1)
    a("v_bfe_u32 v3, v2, 2, 2")
    a("v_lshl_add_u32 v4, v5, 3, v3")
    a("v_lshlrev_b32 v4, 8, v4")
    a("v_and_b32 v6, 1, v5")
    a("v_lshl_add_u32 v3, v6, 2, v3")
    a(f"s_lshl_b32 s{sTmp}, s{sWave}, 1")
    a(f"v_xor_b32 v3, s{sTmp}, v3")
    a("v_lshl_add_u32 v4, v3, 5, v4")
    a("v_and_b32 v3, 3, v2")
    a("v_lshl_add_u32 v4, v3, 3, v4")
    a(f"v_add_u32 v{vB[0]}, {RING}, v4")
    a(f"v_xor_b32 v{vB[1]}, 32, v{vB[0]}")
    vB2 = [253, 60]
    a(f"v_add_u32 v{vB2[0]}, 0x8000, v{vB[0]}")
    a(f"v_add_u32 v{vB2[1]}, 0x8000, v{vB[1]}")
    a("v_and_b32 v3, 15, v2")
    a(f"s_lshl_b32 s{sTmp}, s{sWave}, 5")
    a(f"v_add_u32 v3, s{sTmp}, v3")
    a("v_lshrrev_b32 v4, 2, v3")
    a("v_bfe_u32 v6, v3, 6, 1")
    a("v_xor_b32 v4, v4, v6")
    a("v_lshlrev_b32 v4, 4, v4")
    a("v_and_b32 v6, 3, v3")
    a("v_lshl_add_u32 v4, v6, 2, v4")
    a(f"v_lshl_add_u32 v{vT[0]}, v5, 14, v4")
    a(f"v_add_u32 v{vT[1]}, 64, v{vT[0]}")
    a(f"s_mov_b32 s{sMask3}, 0")
    a(f"s_mov_b32 s{sMask3+1}, 0xffff0000")
    a(f"s_mov_b32 s{sMaskLast}, 0")
    a(f"s_cmp_eq_u32 s{sTt}, {NTILE-1}")
    a(f"s_cselect_b32 s{sMaskLast+1}, s{sMask3+1}, 0")
    a(f"s_mov_b32 s{sMaskG1}, 0xffff0000")
    a(f"s_mov_b32 s{sMaskG1+1}, 0")
    a("s_waitcnt lgkmcnt(0)")
    common_late()
    a(f"s_lshl_b32 s{sSlot}, s{sGrp}, 2")
    a(f"s_add_u32 s{sSlot}, s{sSlot}, s{sWave}")
    a(f"s_lshl_b32 s{sSlot}, s{sSlot}, 14")
    a(f"s_lshl_b32 s{sTmp}, s{sTt}, 8")
    a(f"s_add_u32 s{sTmp}, s{sTmp}, s{sSlot}")
    a(f"v_lshl_add_u32 v{vSl}, v2, 2, s{sTmp}")
    sN = sAny
    a(f"s_mov_b64 s[{sN}:{sN+1}], {1 if opt.nononce else 0}")
    a(f"s_cmp_lg_u32 s{sWave}, 0")
    a("s_cbranch_scc1 L_nosent")
    a("s_cmp_lg_u32 s2, 0" if not opt.nononce else "s_cmp_eq_u32 s2, s2")
    a("s_cbranch_scc1 L_nonon")
    a(f"s_memrealtime s[{sN}:{sN+1}]")
    a("v_lshlrev_b32 v3, 6, v2")
    a("s_waitcnt lgkmcnt(0)")
    a(f"s_or_b32 s{sN}, s{sN}, 1")
    a(f"v_mov_b32 v{vt[0]}, s{sN}")
    a(f"v_mov_b32 v{vt[1]}, s{sN+1}")
    a("s_mov_b64 exec, 15")
    a(f"buffer_store_dwordx2 v[{vt[0]}:{vt[1]}], v3, s[{SDBG}:{SDBG+3}], 0 offen sc1")
    a("s_mov_b64 exec, -1")
    a.label("L_nonon")
    a.label("L_nosent")
    a(f"s_mov_b32 s{sSent}, s{sTmp}")
    srd(SG, 8, 512)
    srd(SB, 10, 512)
    if STAMP:
        a("v_writelane_b32 v63, s94, 0")
        a("v_writelane_b32 v63, s96, 1")
    for i in range(4):
        a(f"s_add_u32 s{sPoll+i}, s{sSlot}, {i*4096}")
    a("v_and_b32 v3, 7, v2")
    a("v_lshlrev_b32 v3, 2, v3")
    a("v_lshrrev_b32 v4, 4, v2")
    a("v_add_u32 v3, v3, v4")
    a(f"s_lshl_b32 s{sTmp}, s{sWave}, 5")
    a(f"v_add_u32 v3, s{sTmp}, v3")
    a(f"v_lshlrev_b32 v{vPar}, 2, v3")
    a(f"v_add_u32 v{vPar}, {PAR}, v{vPar}")
    a(f"s_lshl_b32 s{sTmp}, s{sC}, 7")
    a(f"v_add_lshl_u32 v3, v3, s{sTmp}, 1")
    a(f"buffer_load_ushort v{vBe}, v3, s[{SB}:{SB+3}], 0 offen")
    a(f"buffer_load_ushort v{vG}, v3, s[{SG}:{SG+3}], 0 offen")
    a(f"v_lshlrev_b32 v{vPo}, 4, v2")
    a(f"v_cmp_gt_u32 vcc, 48, v2")
    a(f"v_mov_b32 v{vt[5]}, 0x7ff00000")
    a("s_nop 0")
    a(f"v_cndmask_b32 v{vPo15}, v{vt[5]}, v{vPo}, vcc")
    a(f"s_cmp_lg_u32 s{sWave}, 0")
    a(f"s_cselect_b32 s{sFlagged}, 1, 0")
    vN = 254

    def proto_start():
        lab = a.newlab("L_ps")
        a(f"s_cmp_lg_u32 s{sFlagged}, 0")
        a(f"s_cbranch_scc1 {lab}")
        a("v_lshrrev_b32 v3, 4, v2")
        a("v_lshlrev_b32 v3, 14, v3")
        a("v_and_b32 v4, 15, v2")
        a("v_lshl_add_u32 v3, v4, 4, v3")
        for r in range(4):
            a(f"v_mov_b32 v{vt[r]}, -1")
        a(f"buffer_store_dwordx4 v[{vt[0]}:{vt[3]}], v3, s[{SWS}:{SWS+3}], s{sSent} offen sc1")
        a(f"buffer_load_dwordx2 v[{vN}:{vN+1}], off, s[{SDBG}:{SDBG+3}], 0 sc1")
        a.label(lab)

    def proto_step(blocking):
        lab, top, again = a.newlab("L_pt"), a.newlab("L_ptt"), a.newlab("L_pta")
        a(f"s_cmp_lg_u32 s{sFlagged}, 0")
        a(f"s_cbranch_scc1 {lab}")
        if not blocking:
            a(f"s_getreg_b32 s{sTmp}, hwreg(HW_REG_IB_STS, 0, 4)")
            a(f"s_cmp_lg_u32 s{sTmp}, 0")
            a(f"s_cbranch_scc1 {lab}")
        else:
            a(f"s_mov_b32 s{sSpin}, 0")
        a.label(top)
        a("s_waitcnt vmcnt(0)")
        if opt.nononce:
            a(f"v_mov_b32 v{vN}, 1")
            a(f"v_mov_b32 v{vN+1}, 0")
            a("s_nop 0")
        a(f"v_readfirstlane_b32 s{sTmp}, v{vN}")
        a(f"s_cmp_eq_u32 s{sTmp}, 0")
        a(f"s_cbranch_scc1 {again}")
        a(f"v_mov_b32 v3, {NON}")
        a(f"s_lshl_b32 s{sTmp}, s{sGrp}, 6")
        a(f"s_add_u32 s{sTmp}, s{sTmp}, s{sTt}")
        a(f"s_lshl_b32 s{sTmp}, s{sTmp}, 7")
        a(f"s_add_u32 s{sTmp}, s{sTmp}, {RDY}")
        a("s_mov_b64 exec, 1")
        a(f"ds_write_b64 v3, v[{vN}:{vN+1}]")
        a(f"buffer_store_dwordx2 v[{vN}:{vN+1}], off, s[{SWS}:{SWS+3}], s{sTmp} sc1")
        a("s_mov_b64 exec, -1")
        a(f"s_mov_b32 s{sFlagged}, 1")
        a(f"s_branch {lab}")
        a.label(again)
        a(f"buffer_load_dwordx2 v[{vN}:{vN+1}], off, s[{SDBG}:{SDBG+3}], 0 sc1")
        if blocking:
            a(f"s_add_u32 s{sSpin}, s{sSpin}, 1")
            a(f"s_cmp_le_u32 s{sSpin}, {SPIN_MAX}")
            a(f"s_cbranch_scc1 {top}")
        a.label(lab)

    lds = {"n": 0, "done": -1}
    prod = {}

    def ldsop(txt, dst=None):
        if (opt.noa and txt.startswith("ds_read_b128")) or (opt.nob and txt.startswith("ds_read_b64_tr")):
            return
        if opt.nomfma and (txt.startswith("ds_read_b64_tr") or (txt.startswith("ds_read_b128") and dst != vF)):
            return
        a(txt)
        if dst is not None:
            prod[dst] = lds["n"]
        lds["n"] += 1

    def need(regs):
        if opt.nowait:
            return
        idx = max(prod[r] for r in regs)
        if idx > lds["done"]:
            cnt = lds["n"] - 1 - idx
            a(f"s_waitcnt lgkmcnt({min(cnt,15)})")
            lds["done"] = idx if cnt <= 15 else lds["n"] - 1 - 15

    def a_reads(k, mb):
        j, ks2 = k // 2, k % 2
        g = (8 * k + mb) % NAG
        out = []
        for e in range(2):
            out.append((f"ds_read_b128 v[{FA[g][e]}:{FA[g][e]+3}], v{vA[j&1][e][ks2]} offset:{mb*256}", FA[g][e]))
        return out

    def b_reads(k, tap):
        u = 3 * k + tap
        out = []
        for nb in range(2):
            d = FB[k & 1][tap * 2 + nb]
            for t in range(2):
                sl = u % NSLOT
                vb, off = (vB[nb], sl * 8192) if sl < 4 else (vB2[nb], sl * 8192 - 0x8000)
                out.append((f"ds_read_b64_tr_b16 v[{d+2*t}:{d+2*t+1}], v{vb} offset:{off+t*1024}", (d, t)))
        return out

    def check_level(lvl, prefetched):
        lab, ok = a.newlab("L_lv"), a.newlab("L_lvok")
        if prefetched:
            need([vF])
            a(f"v_min3_u32 v{vF}, v{vF}, v{vF+1}, v{vF+2}")
            a(f"v_min_u32 v{vF}, v{vF}, v{vF+3}")
            a(f"v_cmp_le_u32 vcc, {lvl}, v{vF}")
            a(f"s_cbranch_vccnz {ok}")
        a(f"s_mov_b32 s{sSpin}, 0")
        a.label(lab)
        a(f"s_add_u32 s{sSpin}, s{sSpin}, 1")
        a(f"s_cmp_gt_u32 s{sSpin}, {SPIN_MAX*8}")
        a(f"s_cbranch_scc1 {ok}")
        a(f"ds_read_b128 v[{vF}:{vF+3}], v{vFl}")
        a("s_waitcnt lgkmcnt(0)")
        a(f"v_min3_u32 v{vF}, v{vF}, v{vF+1}, v{vF+2}")
        a(f"v_min_u32 v{vF}, v{vF}, v{vF+3}")
        a(f"v_cmp_le_u32 vcc, {lvl}, v{vF}")
        a(f"s_cbranch_vccz {lab}")
        a.label(ok)
        trace(f"lv{lvl}")

    def mf(d, fa, fb, zero):
        if opt.nomfma:
            return
        c = "0" if zero else f"v[{d}:{d+3}]"
        need([fa, (fb, 0), (fb, 1)])
        if opt.fixop:
            fa, fb = 240, 244
        a(f"v_mfma_f32_16x16x32_bf16 v[{d}:{d+3}], v[{fa}:{fa+3}], v[{fb}:{fb+3}], {c}")

    def done_write(val):
        if opt.nodone:
            return
        a(f"v_mov_b32 v{vt[6]}, {val}")
        ldsop(f"ds_write_b32 v{vDn}, v{vt[6]}")

    a("s_barrier")
    stamp(1, vt[0], vt[1])
    for tap in range(3):
        for r in b_reads(0, tap):
            ldsop(*r)
        if tap == 0:
            for r in a_reads(0, 0):
                ldsop(*r)
    PD = opt.pd
    for g in range(1, PD):
        for r in a_reads(0, g):
            ldsop(*r)
    CHK = opt.chk
    BSP = opt.bsp
    assert CHK + BSP <= 8 and CHK <= 8 - PD
    for k in range(8):
        a.c(f"---- step {k}")
        fb = FB[k & 1]
        bq = []
        if k < 7:
            for tap in range(3):
                bq += [("l", r) for r in b_reads(k + 1, tap)]
        for mb in range(8):
            g = (8 * k + mb) % NAG
            E, O = FA[g]
            z = k == 0
            if opt.chain:
                seq = [(P[0] + 4 * mb, E, fb[0], z), (P[0] + 4 * mb, O, fb[2], False), (P[1] + 4 * mb, O, fb[3], z),
                       (P[1] + 4 * mb, E, fb[1], False), (Q[1] + 4 * mb, E, fb[5], z), (Q[0] + 4 * mb, E, fb[4], z)]
                gaps = [1, 3, 4, 5] if opt.chain == 2 else [0, 1, 2, 3, 4, 5]
            else:
                seq = [(P[0] + 4 * mb, E, fb[0], z), (P[1] + 4 * mb, E, fb[1], z), (Q[0] + 4 * mb, E, fb[4], z),
                       (Q[1] + 4 * mb, E, fb[5], z), (P[0] + 4 * mb, O, fb[2], False), (P[1] + 4 * mb, O, fb[3], False)]
                gaps = [0, 1, 2, 3, 4, 5]
            side = []
            nx = 8 * k + mb + PD
            if nx < 64:
                side += [("l", r) for r in a_reads(nx // 8, nx % 8)]
            if k < 7 and CHK <= mb < CHK + BSP:
                left = CHK + BSP - mb
                tk = (len(bq) + left - 1) // left
                side += bq[:tk]
                bq = bq[tk:]
            if mb == 0 and k in (2, 4):
                set_abase(k // 2 + 1)
            need([E, O])
            for i in range(6):
                mf(*seq[i])
                if k < 7 and mb == CHK and i == (1 if opt.chain else 0):
                    a("s_barrier")
                if i in gaps and not (k < 7 and mb == CHK and opt.chain and i == 0):
                    rem = len([g_ for g_ in gaps if g_ >= i])
                    take = (len(side) + rem - 1) // rem
                    for _ in range(take):
                        kind, r = side.pop(0)
                        ldsop(*r)
            assert not side
    stamp(2, vt[0], vt[1])
    a("s_nop 7")
    Zr = [vt[0], vt[2]]
    for nb in range(2):
        y, x2 = vt[2 * nb], vt[2 * nb + 1]
        a(f"v_mov_b32 v{y}, v{Q[nb]}")
    a("s_nop 1")
    for nb in range(2):
        y, x2 = vt[2 * nb], vt[2 * nb + 1]
        a(f"v_permlane16_swap_b32 v{Q[nb]}, v{y}")
    a("s_nop 1")
    for nb in range(2):
        y, x2 = vt[2 * nb], vt[2 * nb + 1]
        a(f"v_mov_b32 v{x2}, v{Q[nb]}")
    a("s_nop 1")
    for nb in range(2):
        y, x2 = vt[2 * nb], vt[2 * nb + 1]
        a(f"v_permlane32_swap_b32 v{Q[nb]}, v{x2}")
    a("s_nop 1")
    for nb in range(2):
        y, x2 = vt[2 * nb], vt[2 * nb + 1]
        a(f"v_cndmask_b32 v{y}, v{y}, v{x2}, s[{sMaskG1}:{sMaskG1+1}]")
    SA = [[192, 196], [200, 204]]
    for nb in range(2):
        p, q = P[nb], Q[nb]
        for r in range(0, 30, 2):
            a(f"v_pk_add_f32 v[{p+r}:{p+r+1}], v[{p+r}:{p+r+1}], v[{q+r+2}:{q+r+3}]")
        a(f"v_add_f32 v{p+30}, v{p+30}, v{q+1}")
        a(f"v_add_f32 v{p+31}, v{p+31}, v{Zr[nb]}")
        a(f"v_cndmask_b32 v{p+31}, v{p+31}, 0, s[{sMask3}:{sMask3+1}]")
        a(f"v_cndmask_b32 v{p+29}, v{p+29}, 0, s[{sMaskLast}:{sMaskLast+1}]")
        a(f"v_cndmask_b32 v{p+27}, v{p+27}, 0, s[{sMaskLast}:{sMaskLast+1}]")
        s1, s2 = SA[nb]
        a(f"v_pk_add_f32 v[{s1}:{s1+1}], v[{p}:{p+1}], v[{p+2}:{p+3}]")
        a(f"v_pk_add_f32 v[{s1+2}:{s1+3}], v[{p+4}:{p+5}], v[{p+6}:{p+7}]")
        a(f"v_pk_mul_f32 v[{s2}:{s2+1}], v[{p}:{p+1}], v[{p}:{p+1}]")
        a(f"v_pk_mul_f32 v[{s2+2}:{s2+3}], v[{p+2}:{p+3}], v[{p+2}:{p+3}]")
        for r in range(4, 32, 2):
            o = 2 * ((r >> 1) & 1)
            x = f"v[{p+r}:{p+r+1}]"
            a(f"v_pk_fma_f32 v[{s2+o}:{s2+o+1}], {x}, {x}, v[{s2+o}:{s2+o+1}]")
            if r >= 8:
                a(f"v_pk_add_f32 v[{s1+o}:{s1+o+1}], v[{s1+o}:{s1+o+1}], {x}")
    for nb in range(2):
        for st in range(2):
            s = SA[nb][st]
            a(f"v_pk_add_f32 v[{s}:{s+1}], v[{s}:{s+1}], v[{s+2}:{s+3}]")
    for nb in range(2):
        for st in range(2):
            s = SA[nb][st]
            a(f"v_add_f32 v{s}, v{s}, v{s+1}")

    def reduce4(v0_, v1_, v2_, v3_):
        a("s_nop 1")
        a(f"v_permlane16_swap_b32 v{v0_}, v{v1_}")
        a(f"v_permlane16_swap_b32 v{v2_}, v{v3_}")
        a("s_nop 1")
        a(f"v_add_f32 v{v0_}, v{v0_}, v{v1_}")
        a(f"v_add_f32 v{v2_}, v{v2_}, v{v3_}")
        a("s_nop 1")
        a(f"v_permlane32_swap_b32 v{v0_}, v{v2_}")
        a("s_nop 1")
        a(f"v_add_f32 v{v0_}, v{v0_}, v{v2_}")

    reduce4(SA[0][0], SA[1][0], SA[0][1], SA[1][1])
    S1 = SA[0][0]
    a(f"v_cmp_eq_u32 vcc, -1, v{S1}")
    a(f"v_mov_b32 v{S1+1}, 0x7fc00000")
    a("s_nop 0")
    a(f"v_cndmask_b32 v{S1}, v{S1}, v{S1+1}, vcc")
    a(f"buffer_store_dword v{S1}, v{vSl}, s[{SWS}:{SWS+3}], 0 offen sc1")
    stamp(3, vt[0], vt[1])
    trace("pub")
    trace_dump(1)
    a("s_barrier")
    PL = [128 + 4 * m for m in range(16)]

    def poll_load(m):
        vo = vPo15 if m == 15 else vPo
        return f"buffer_load_dwordx4 v[{PL[m]}:{PL[m]+3}], v{vo}, s[{SWS}:{SWS+3}], s{sPoll+(m>>2)} offen offset:{(m&3)*1024} sc1"

    def t_writes():
        for nb in range(2):
            for r in range(0, 32, 2):
                o0 = (r >> 1) * 2
                a(f"ds_write2st64_b32 v{vT[nb]}, v{P[nb]+r}, v{P[nb]+r+1} offset0:{o0} offset1:{o0+32}")

    if opt.twoph:
        a(f"s_bfe_u32 s{sTmp}, s2, 0x30004")
        a(f"s_lshl_b32 s{sTmp}, s{sTmp}, 10")
        a(f"s_add_u32 s{sTmp}, s{sTmp}, s{sSlot}")
        a(f"s_add_u32 s{sTmp2}, s{sTmp}, 8192")
        a(f"buffer_load_dwordx4 v[{PL[0]}:{PL[0]+3}], v{vPo}, s[{SWS}:{SWS+3}], s{sTmp} offen sc1")
        a(f"buffer_load_dwordx4 v[{PL[1]}:{PL[1]+3}], v{vPo}, s[{SWS}:{SWS+3}], s{sTmp2} offen sc1")
        t_writes()
        tread_setup()
        a("s_waitcnt lgkmcnt(0)")
        a("s_barrier")
        tread_issue()
        if opt.twoph == 2:
            a("s_waitcnt vmcnt(0)")
        for m in range(16):
            a(poll_load(m))
    else:
        if opt.pollfirst == 1:
            for m in range(16):
                a(poll_load(m))
            t_writes()
        elif opt.pollfirst == 0:
            t_writes()
            for m in range(16):
                a(poll_load(m))
        else:
            t_writes()
        tread_setup()
        a("s_waitcnt lgkmcnt(0)")
        if opt.pollfirst == 2:
            for m in range(16):
                a(poll_load(m))
        a("s_barrier")
        if opt.pollfirst == 3:
            for m in range(16):
                a(poll_load(m))
        tread_issue()
        if opt.pollfirst == 4:
            a("s_waitcnt lgkmcnt(0)")
            for m in range(16):
                a(poll_load(m))
    PM = [4 + 2 * i for i in range(12)] + [40 + 2 * i for i in range(4)]
    a(f"s_mov_b32 s{sSpin}, 0")
    a("s_waitcnt vmcnt(0)")
    for m in range(16):
        a(f"v_max3_u32 v{vt[m&3]}, v{PL[m]}, v{PL[m]+1}, v{PL[m]+2}")
        a(f"v_max_u32 v{vt[m&3]}, v{vt[m&3]}, v{PL[m]+3}")
        a(f"v_cmp_eq_u32 s[{PM[m]}:{PM[m]+1}], -1, v{vt[m&3]}")
    a.label("L_poll")
    a(f"s_or_b64 s[{sAny}:{sAny+1}], s[{PM[0]}:{PM[0]+1}], s[{PM[1]}:{PM[1]+1}]")
    for m in range(2, 16):
        a(f"s_or_b64 s[{sAny}:{sAny+1}], s[{sAny}:{sAny+1}], s[{PM[m]}:{PM[m]+1}]")
    a("s_cbranch_scc0 L_pdone")
    a(f"s_add_u32 s{sSpin}, s{sSpin}, 1")
    a(f"s_cmp_gt_u32 s{sSpin}, {SPIN_MAX}")
    a("s_cbranch_scc1 L_pdone")
    for m in range(16):
        lab = a.newlab("L_pl")
        a(f"s_mov_b64 exec, s[{PM[m]}:{PM[m]+1}]")
        a(f"s_cbranch_execz {lab}")
        a(poll_load(m))
        a.label(lab)
    a("s_waitcnt vmcnt(0)")
    for m in range(16):
        lab = a.newlab("L_pc")
        a(f"s_mov_b64 exec, s[{PM[m]}:{PM[m]+1}]")
        a(f"s_cbranch_execz {lab}")
        a(f"v_max3_u32 v{vt[0]}, v{PL[m]}, v{PL[m]+1}, v{PL[m]+2}")
        a(f"v_max_u32 v{vt[0]}, v{vt[0]}, v{PL[m]+3}")
        a(f"v_cmp_eq_u32 s[{PM[m]}:{PM[m]+1}], -1, v{vt[0]}")
        a.label(lab)
    a("s_mov_b64 exec, -1")
    a("s_branch L_poll")
    a.label("L_pdone")
    a("s_mov_b64 exec, -1")
    stamp(4, vt[0], vt[1])
    step = 1
    while step < 16:
        for m in range(0, 16, 2 * step):
            for hh in range(2):
                d, s_ = PL[m] + 2 * hh, PL[m + step] + 2 * hh
                a(f"v_pk_add_f32 v[{d}:{d+1}], v[{d}:{d+1}], v[{s_}:{s_+1}]")
        step *= 2
    v0_, v1_, v2_, v3_ = PL[0], PL[0] + 1, PL[0] + 2, PL[0] + 3
    reduce4(v0_, v1_, v2_, v3_)
    a("s_nop 1")
    a(f"v_mov_b32_dpp v{v1_}, v{v0_} row_ror:8 row_mask:0xf bank_mask:0xf")
    c1 = -2.0 * math.sqrt(2.0 / math.pi) * math.log2(math.e)
    c2 = c1 * 0.044715
    sc = -((-c2) ** (1.0 / 3.0))
    a(f"v_mul_f32 v{v0_}, {hex(f2u(1.0/L_OUT))}, v{v0_}")
    a(f"v_mul_f32 v{v1_}, {hex(f2u(1.0/L_OUT))}, v{v1_}")
    a(f"v_fma_f32 v{v1_}, -v{v0_}, v{v0_}, v{v1_}")
    a(f"v_max_f32 v{v1_}, 0, v{v1_}")
    a(f"v_add_f32 v{v1_}, {hex(f2u(1e-5))}, v{v1_}")
    a(f"v_rsq_f32 v{v1_}, v{v1_}")
    a(f"v_lshlrev_b32 v{vG}, 16, v{vG}")
    a(f"v_lshlrev_b32 v{vBe}, 16, v{vBe}")
    a(f"v_mul_f32 v{vG}, {hex(f2u(sc))}, v{vG}")
    a(f"v_mul_f32 v{vBe}, {hex(f2u(sc))}, v{vBe}")
    a(f"v_mul_f32 v{v1_}, v{v1_}, v{vG}")
    a(f"v_fma_f32 v{v0_}, -v{v0_}, v{v1_}, v{vBe}")
    a(f"s_mov_b32 s{sTmp}, 0x00ff00ff")
    a(f"s_mov_b32 exec_lo, s{sTmp}")
    a(f"s_mov_b32 exec_hi, s{sTmp}")
    a(f"ds_write2_b32 v{vPar}, v{v1_}, v{v0_} offset0:0 offset1:128")
    a("s_mov_b64 exec, -1")
    a("s_waitcnt lgkmcnt(0)")
    a("s_barrier")

    a.label("L_epi")
    SCL, SHF = 16, 24
    a(f"ds_read_b128 v[{SCL}:{SCL+3}], v10")
    a(f"ds_read_b128 v[{SCL+4}:{SCL+7}], v10 offset:16")
    a(f"ds_read_b128 v[{SHF}:{SHF+3}], v10 offset:512")
    a(f"ds_read_b128 v[{SHF+4}:{SHF+7}], v10 offset:528")
    k1 = c1 / sc
    a(f"s_mov_b32 s{sK}, {hex(f2u(k1))}")
    a(f"s_mov_b32 s{sK+1}, {hex(f2u(k1))}")
    a(f"s_mov_b32 s{sK+2}, {hex(f2u(sc))}")
    a(f"s_mov_b32 s{sK+3}, {hex(f2u(sc))}")
    a("s_waitcnt lgkmcnt(0)")
    W_, O_ = 32, 48
    for i in range(4):
        h = H[i]
        w_ = W_ + 8 * (i & 1)
        o_ = O_ + 4 * (i & 1)
        for p in range(4):
            a(f"v_pk_fma_f32 v[{h+2*p}:{h+2*p+1}], v[{h+2*p}:{h+2*p+1}], v[{SCL+2*p}:{SCL+2*p+1}], v[{SHF+2*p}:{SHF+2*p+1}]")
        for p in range(4):
            a(f"v_pk_fma_f32 v[{w_+2*p}:{w_+2*p+1}], v[{h+2*p}:{h+2*p+1}], v[{h+2*p}:{h+2*p+1}], s[{sK}:{sK+1}]")
        for p in range(4):
            a(f"v_pk_mul_f32 v[{w_+2*p}:{w_+2*p+1}], v[{w_+2*p}:{w_+2*p+1}], v[{h+2*p}:{h+2*p+1}]")
        for e in range(8):
            a(f"v_exp_f32 v{w_+e}, v{w_+e}")
        for p in range(4):
            a(f"v_pk_fma_f32 v[{w_+2*p}:{w_+2*p+1}], v[{w_+2*p}:{w_+2*p+1}], s[{sK+2}:{sK+3}], s[{sK+2}:{sK+3}]")
        for e in range(8):
            a(f"v_rcp_f32 v{w_+e}, v{w_+e}")
        for p in range(4):
            a(f"v_pk_mul_f32 v[{w_+2*p}:{w_+2*p+1}], v[{w_+2*p}:{w_+2*p+1}], v[{h+2*p}:{h+2*p+1}]")
        for p in range(4):
            a(f"v_cvt_pk_bf16_f32 v{o_+p}, v{w_+2*p}, v{w_+2*p+1}")
        vo = 9 if i == 3 else 8
        a(f"buffer_store_dwordx4 v[{o_}:{o_+3}], v{vo}, s[{SO}:{SO+3}], s{sOutB+i} offen{ONT}")
    if STAMP:
        a("v_lshrrev_b32 v60, 6, v0")
        a(f"v_cmp_eq_u32 vcc, {max(opt.stampw,0)}, v60")
        a("s_cbranch_vccz L_end")
        stamp(5)
        a("s_waitcnt vmcnt(0)")
        stamp(6)
        stamp_dump("0x3fff")
    a.label("L_end")
    a("s_endpgm")
    a.label("L_codeend")

    hdr = open("cdna_kernels/%s.s.ref" % NAME).read().split("\n")
    head = []
    for ln in hdr:
        if ln.startswith("; @launch"):
            head.append("; @launch grid=(254,1,1) block=(512,1,1) lds=163840")
            break
        head.append(ln)
    out = "\n".join(head) + "\n"
    out += f""".amdgcn_target "amdgcn-amd-amdhsa--gfx950"
.text
.globl {NAME}_kernel
.p2align 8
.type {NAME}_kernel,@function
{NAME}_kernel:
"""
    out += a.text()
    out += f""".section .rodata,"a"
.p2align 6
.amdhsa_kernel {NAME}_kernel
  .amdhsa_next_free_vgpr 256
  .amdhsa_next_free_sgpr 102
  .amdhsa_accum_offset 256
  .amdhsa_group_segment_fixed_size 0
  .amdhsa_kernarg_size 56
  .amdhsa_user_sgpr_count 2
  .amdhsa_user_sgpr_kernarg_segment_ptr 1
  .amdhsa_system_sgpr_workgroup_id_x 1
.end_amdhsa_kernel
"""
    return out


def parse(argv=None):
    ap = argparse.ArgumentParser()
    ap.add_argument("-o", default="cdna_kernels/%s.s" % NAME)
    ap.add_argument("--stamp", type=int, default=0)
    ap.add_argument("--skipdma", type=int, default=0)
    ap.add_argument("--sleep", type=int, default=1)
    ap.add_argument("--nomfma", type=int, default=0)
    ap.add_argument("--rot", type=int, default=1)
    ap.add_argument("--freerun", type=int, default=0)
    ap.add_argument("--trace", type=int, default=0)
    ap.add_argument("--nononce", type=int, default=0)
    ap.add_argument("--xpol", default="nt,nt")
    ap.add_argument("--nown", type=int, default=4)
    ap.add_argument("--nocheck", type=int, default=0)
    ap.add_argument("--prio", type=int, default=0)
    ap.add_argument("--lprio", type=int, default=0)
    ap.add_argument("--bsp", type=int, default=5)
    ap.add_argument("--esleep", type=int, default=1)
    ap.add_argument("--stampw", type=int, default=-1)
    ap.add_argument("--fl_ahead", type=int, default=2)
    ap.add_argument("--ntry", default="16,30,44")
    ap.add_argument("--nowait", type=int, default=0)
    ap.add_argument("--nodone", type=int, default=0)
    ap.add_argument("--ldvgpr", type=int, default=0)
    ap.add_argument("--nopub", type=int, default=0)
    ap.add_argument("--noa", type=int, default=0)
    ap.add_argument("--nob", type=int, default=0)
    ap.add_argument("--fixop", type=int, default=0)
    ap.add_argument("--lregion", type=int, default=-1)
    ap.add_argument("--caps", default="20,10,12")
    ap.add_argument("--ldelay", type=int, default=0)
    ap.add_argument("--chain", type=int, default=0)
    ap.add_argument("--twoph", type=int, default=0)
    ap.add_argument("--xnt", type=int, default=1)
    ap.add_argument("--wpf", type=int, default=1)
    ap.add_argument("--wpf_pos", type=int, default=0)
    ap.add_argument("--cpf", type=int, default=10)
    ap.add_argument("--ostore", default="sc0+sc1")
    ap.add_argument("--order", default="H0 W0 L0 P H1+W1 H2+W2 L1 H3+W3 L2 W4 W5 L3 W6 W7")
    ap.add_argument("--depth", type=int, default=6)
    ap.add_argument("--throttle", type=int, default=0)
    ap.add_argument("--pd", type=int, default=3)
    ap.add_argument("--chk", type=int, default=2)
    ap.add_argument("--pollfirst", type=int, default=1)
    o = ap.parse_args(argv)
    if o.ostore:
        o.ostore = " " + o.ostore.replace("+", " ")
    return o


if __name__ == "__main__":
    o = parse()
    open(o.o, "w").write(gen(o))
```

```python
import sys, math, struct, argparse

NAME = "standalone__self_sup_conv_stem_wavlm__speech"
L_OUT = 7999
TR = 127
NTILE = 63
XB_BATCH = 16000 * 512
X_BYTES = 2 * XB_BATCH
W_BYTES = 3 * 256 * 256 * 2
OUT_BYTES = 2 * L_OUT * 512
FLG = 163840
PAR = 65536
RDY = 0x40000
SPIN_MAX = 200000


def f2u(f):
    return struct.unpack("<I", struct.pack("<f", f))[0]


class Asm:
    def __init__(self):
        self.lines = []
        self.lab = 0

    def __call__(self, s):
        self.lines.append("    " + s)

    def label(self, n):
        self.lines.append(n + ":")

    def newlab(self, p="L"):
        self.lab += 1
        return f"{p}_{self.lab}"

    def c(self, s):
        self.lines.append("    ; " + s)

    def text(self):
        return "\n".join(self.lines) + "\n"


def xslot(kind, j):
    return 2 * (j % 3) + (0 if kind == "E" else 1)


def build_stream(spec):
    def X(which, j):
        return [("x", which, j, qq) for qq in range(4)]

    def Wu(u):
        return [("w", u, 0), ("w", u, 1)]

    def one(t):
        if t == "P":
            return [("pf",)]
        if t == "F":
            return [("fl",)]
        n = int(t[1:])
        if t[0] == "H":
            return X(0, n)
        if t[0] == "L":
            return X(1, n)
        if t[0] == "W":
            return Wu(3 * n) + Wu(3 * n + 1) + Wu(3 * n + 2)
        if t[0] == "U":
            return Wu(n)
        raise ValueError(t)

    def mix(a, b):
        out = []
        ia = ib = 0
        while ia < len(a) or ib < len(b):
            if ib >= len(b) or (ia < len(a) and ia * len(b) <= ib * len(a)):
                out.append(a[ia]); ia += 1
            else:
                out.append(b[ib]); ib += 1
        return out

    S = []
    for tok in spec.split():
        parts = [sum((one(t) for t in p.split(",")), []) for p in tok.split("+")]
        cur = parts[0]
        for p in parts[1:]:
            cur = mix(cur, p)
        S += cur
    assert len([t for t in S if t[0] not in ("pf", "fl")]) == 80 and len(set(S)) == len(S), (len(S), spec)
    return S


def gen(opt):
    a = Asm()
    STAMP = opt.stamp
    XPOL = [(" " + p.replace("+", " ")) if p != "-" else "" for p in opt.xpol.split(",")]
    ONT = opt.ostore
    WPOL = (" " + opt.wpol.replace("+", " ")) if opt.wpol != "-" else ""
    D = opt.depth
    NOWN = opt.nown
    PART = NOWN * 16384
    RING = PART + 32768
    NSLOT = (FLG - RING) // 8192

    SX, SW, SO, SWS, SDBG, SG, SB = 20, 24, 28, 32, 36, 40, 44
    sT, sC, sBt, sTt, sGrp, sWave, sTmp, sTmp2 = 48, 49, 50, 51, 52, 53, 54, 55
    sXb0, sXb1, sXl0, sXl1, sWb, sWl, sOff = 56, 57, 58, 59, 60, 61, 62
    sLvl = 63
    sMask3, sMaskLast, sMaskG1 = 64, 66, 68
    sSlot = 70
    sPoll = 71
    sOutB = 75
    sNv = 79
    sK = 80
    sSt = 84
    sStB = 86
    sSpin = 87
    sEx = 88
    sPc = 90
    sAny = 92
    sPub = 93
    sSent, sFlagged = 90, 91
    sPM = 4

    def srd(d, p, nbytes):
        a(f"s_mov_b32 s{d}, s{p}")
        a(f"s_and_b32 s{d+1}, s{p+1}, 0xffff")
        a(f"s_mov_b32 s{d+2}, {nbytes}")
        a(f"s_mov_b32 s{d+3}, 0x20000")

    def stamp(idx, vt0=None, vt1=None):
        if not STAMP:
            return
        a(f"s_memrealtime s[{sSt}:{sSt+1}]")
        a("s_memtime s[98:99]")
        a("s_waitcnt lgkmcnt(0)")
        a(f"v_writelane_b32 v63, s{sSt}, {2*idx}")
        a(f"v_writelane_b32 v63, s98, {2*idx+1}")

    def stamp_dump(mask):
        a(f"s_mov_b64 exec, {mask}")
        a("v_lshlrev_b32 v60, 2, v2")
        a(f"buffer_store_dword v63, v60, s[{SWS}:{SWS+3}], s{sStB} offen")
        a("s_mov_b64 exec, -1")

    trc = {"n": 0, "names": []}

    def trace(name):
        if not opt.trace:
            return
        if trc["n"] >= 128:
            return
        a("s_memtime s[100:101]")
        a("s_waitcnt lgkmcnt(0)")
        a(f"v_writelane_b32 v{62 if trc['n'] < 64 else 61}, s100, {trc['n'] % 64}")
        trc["names"].append(name)
        trc["n"] += 1

    def trace_dump(half):
        if not opt.trace:
            return
        lab = a.newlab("L_td")
        a(f"s_cmp_lg_u32 s{sWave}, 0")
        a(f"s_cbranch_scc1 {lab}")
        a(f"s_lshl_b32 s{sTmp}, s2, 10")
        a(f"s_add_u32 s{sTmp}, s{sTmp}, {0x180000 + half*512}")
        a("v_lshlrev_b32 v63, 2, v2")
        a(f"buffer_store_dword v62, v63, s[{SWS}:{SWS+3}], s{sTmp} offen")
        a(f"buffer_store_dword v61, v63, s[{SWS}:{SWS+3}], s{sTmp} offen offset:256")
        a.label(lab)
        sys.stderr.write(f"TRACE{half}: " + ",".join(trc["names"]) + "\n")
        trc["n"] = 0
        trc["names"] = []

    if STAMP:
        a("s_memrealtime s[94:95]")
        a("s_memtime s[96:97]")
    a("s_load_dwordx8 s[4:11], s[0:1], 0")
    a("s_load_dwordx4 s[12:15], s[0:1], 32")
    a("s_load_dwordx2 s[16:17], s[0:1], 48")
    a(f"s_lshr_b32 s{sTmp}, s2, 4")
    a(f"s_lshl_b32 s{sTmp}, s{sTmp}, 3")
    a(f"s_and_b32 s{sTmp2}, s2, 7")
    a(f"s_add_u32 s{sT}, s{sTmp}, s{sTmp2}")
    a(f"s_cmp_ge_u32 s{sT}, {2*NTILE}")
    a("s_cbranch_scc1 L_end")
    a("v_lshrrev_b32 v1, 6, v0")
    a("v_and_b32 v2, 63, v0")
    a(f"v_readfirstlane_b32 s{sWave}, v1")
    a(f"s_bfe_u32 s{sC}, s2, 0x10003")
    a(f"s_cmp_ge_u32 s{sT}, {NTILE}")
    a(f"s_cselect_b32 s{sBt}, 1, 0")
    a(f"s_mul_i32 s{sTmp}, s{sBt}, {NTILE}")
    a(f"s_sub_u32 s{sTt}, s{sT}, s{sTmp}")
    a(f"s_cmp_lt_u32 s{sWave}, 4")
    a("s_cbranch_scc1 L_compute")

    def common_late():
        a(f"s_lshl_b32 s{sGrp}, s{sBt}, 1")
        a(f"s_add_u32 s{sGrp}, s{sGrp}, s{sC}")
        a(f"s_cmp_eq_u32 s{sTt}, {NTILE-1}")
        a(f"s_cselect_b32 s{sNv}, {TR - (L_OUT - TR*(NTILE-1))}, 0")
        a(f"s_sub_u32 s{sNv}, {TR}, s{sNv}")
        a(f"s_lshl_b32 s{sStB}, s2, 8")
        a(f"s_add_u32 s{sStB}, s{sStB}, 0x100000")
        srd(SO, 12, OUT_BYTES)
        srd(SWS, 16, 0x200000 if STAMP else 0x48000)
        srd(SDBG, 14, 256)
        a(f"s_mul_i32 s{sTmp}, s{sBt}, {L_OUT}")
        a(f"s_mul_i32 s{sTmp2}, s{sTt}, {TR}")
        a(f"s_add_u32 s{sTmp}, s{sTmp}, s{sTmp2}")
        a(f"s_lshl_b32 s{sOutB}, s{sTmp}, 9")
        for i in range(1, 4):
            a(f"s_add_u32 s{sOutB+i}, s{sOutB}, {i*16384}")

    a(f"s_sub_u32 s{sWave}, s{sWave}, 4")
    if opt.lprio:
        a(f"s_setprio {opt.lprio}")
    a("v_lshrrev_b32 v5, 3, v2")
    a("v_lshlrev_b32 v5, 10, v5")
    a(f"s_lshl_b32 s{sTmp}, s{sWave}, 1")
    a("v_and_b32 v6, 7, v2")
    a(f"v_xor_b32 v6, s{sTmp}, v6")
    a("v_lshl_add_u32 v3, v6, 4, v5")
    a("v_xor_b32 v4, 16, v3")
    a("v_lshrrev_b32 v6, 4, v2")
    a(f"s_lshr_b32 s{sTmp}, s{sWave}, 1")
    a(f"s_lshl_b32 s{sTmp}, s{sTmp}, 2")
    a(f"v_or_b32 v7, s{sTmp}, v6")
    a("v_bfe_u32 v8, v2, 1, 3")
    a("v_xor_b32 v7, v7, v8")
    a("v_lshlrev_b32 v5, 9, v6")
    a("v_lshl_add_u32 v5, v7, 5, v5")
    a("v_and_b32 v7, 1, v2")
    a("v_lshl_add_u32 v5, v7, 4, v5")
    a(f"s_bfe_u32 s{sTmp}, s2, 0x50003")
    a(f"s_lshl_b32 s{sTmp}, s{sTmp}, 2")
    a(f"s_add_u32 s{sTmp}, s{sTmp}, s{sWave}")
    a(f"s_mul_i32 s{sTmp}, s{sTmp}, 3072")
    a("v_min_u32 v6, 47, v2")
    a(f"v_lshl_add_u32 v6, v6, 6, s{sTmp}")
    a(f"s_mul_i32 s{sXb0}, s{sBt}, {XB_BATCH}")
    a(f"s_mul_i32 s{sTmp}, s{sTt}, {TR*1024}")
    a(f"s_add_u32 s{sXb0}, s{sXb0}, s{sTmp}")
    a(f"s_lshl_b32 s{sTmp}, s{sWave}, 15")
    a(f"s_add_u32 s{sXb0}, s{sXb0}, s{sTmp}")
    a(f"s_lshl_b32 s{sTmp}, s{sC}, 9")
    a(f"s_xor_b32 s{sTmp2}, s{sTmp}, 512")
    a(f"s_add_u32 s{sXb1}, s{sXb0}, s{sTmp2}")
    a(f"s_add_u32 s{sXb0}, s{sXb0}, s{sTmp}")
    a(f"s_lshl_b32 s{sXl0}, s{sWave}, 12")
    a(f"s_add_u32 s{sXl1}, s{sXl0}, {PART}")
    a(f"s_lshl_b32 s{sWb}, s{sWave}, 11")
    a(f"s_lshl_b32 s{sTmp}, s{sC}, 8")
    a(f"s_add_u32 s{sWb}, s{sWb}, s{sTmp}")
    a(f"s_lshl_b32 s{sWl}, s{sWave}, 10")
    a(f"s_add_u32 s{sWl}, s{sWl}, {RING}")
    RX0, RX1, RW = [64, 65, 66, 67], [71, 72, 73, 74], [80, 81, 82, 83]
    for j in range(4):
        if opt.rot:
            a(f"s_lshr_b32 s{sTmp}, s2, 4")
            a(f"s_add_u32 s{sTmp}, s{sTmp}, {j}")
            a(f"s_and_b32 s{sTmp}, s{sTmp}, 3")
        else:
            a(f"s_mov_b32 s{sTmp}, {j}")
        a(f"s_lshl_b32 s{sTmp2}, s{sTmp}, 7")
        a(f"s_add_u32 s{RX0[j]}, s{sXb0}, s{sTmp2}")
        a(f"s_add_u32 s{RX1[j]}, s{sXb1}, s{sTmp2}")
        a(f"s_lshl_b32 s{sTmp2}, s{sTmp}, 15")
        a(f"s_add_u32 s{RW[j]}, s{sWb}, s{sTmp2}")
    a("s_waitcnt lgkmcnt(0)")
    if STAMP >= 2:
        stamp(8)
    srd(SX, 4, X_BYTES)
    srd(SW, 6, W_BYTES)
    trace("start")

    specs = opt.order.split("/")
    ncls = len(specs)
    if ncls > 1:
        a(f"s_and_b32 s{sTmp}, s{sT}, {ncls//2 - 1}")
        a(f"s_lshl_b32 s{sTmp}, s{sTmp}, 1")
        a(f"s_add_u32 s{sTmp}, s{sTmp}, s{sC}")
        for ci in range(1, ncls):
            a(f"s_cmp_eq_u32 s{sTmp}, {ci}")
            a(f"s_cbranch_scc1 L_cls{ci}")

    def lproto(cnt, blocking):
        lab, top, again = a.newlab("L_pt"), a.newlab("L_ptt"), a.newlab("L_pta")
        a(f"s_cmp_lg_u32 s{sFlagged}, 0")
        a(f"s_cbranch_scc1 {lab}")
        if blocking:
            a(f"s_mov_b32 s{sSpin}, 0")
        a.label(top)
        a(f"s_waitcnt vmcnt({cnt})")
        a(f"v_readfirstlane_b32 s{sTmp}, v26")
        a(f"s_cmp_eq_u32 s{sTmp}, 0")
        a(f"s_cbranch_scc1 {again}")
        a(f"s_lshl_b32 s{sTmp}, s{sGrp}, 6")
        a(f"s_add_u32 s{sTmp}, s{sTmp}, s{sTt}")
        a(f"s_lshl_b32 s{sTmp}, s{sTmp}, 7")
        a(f"s_add_u32 s{sTmp}, s{sTmp}, {RDY}")
        a("s_mov_b64 exec, 1")
        a(f"buffer_store_dwordx2 v[26:27], off, s[{SWS}:{SWS+3}], s{sTmp} sc1")
        a("s_mov_b64 exec, -1")
        a(f"s_mov_b32 s{sFlagged}, 1")
        a(f"s_branch {lab}")
        a.label(again)
        a(f"buffer_load_dwordx2 v[26:27], off, s[{SDBG}:{SDBG+3}], 0 sc1")
        if blocking:
            a(f"s_add_u32 s{sSpin}, s{sSpin}, 1")
            a(f"s_cmp_le_u32 s{sSpin}, {SPIN_MAX}")
            a(f"s_cbranch_scc1 {top}")
        a.label(lab)

    def emit_loader(spec):
        stream = build_stream(spec)
        if opt.skipdma:
            stream = [it for i, it in enumerate(stream) if i < 16 or not (
                opt.skipdma == 3 or (opt.skipdma == 1 and it[0] == "x") or (opt.skipdma == 2 and it[0] == "w"))]

        def earliest(it):
            if opt.freerun:
                return -2
            if it[0] == "w" and it[1] >= NSLOT:
                return (it[1] - NSLOT) // 3
            if it[0] == "x":
                ns = NOWN if it[1] == 0 else 2
                if it[2] >= ns:
                    return 2 * (it[2] - ns) + 2
            return -2

        def req(k):
            r = [("w", u, h) for u in range(3 * k, 3 * k + 3) for h in range(2)]
            r += [("x", wh, k // 2, qq) for wh in range(2) for qq in range(4)]
            return [it for it in r if it in stream]

        caps = [int(v) for v in opt.caps.split(",")]
        issued = []
        pos = 0

        def issue(it):
            i = len(issued)
            if it[0] == "x":
                _, wh, j, qq = it
                sb, sl = (RX0[j], sXl0) if wh == 0 else (RX1[j], sXl1)
                a(f"s_add_u32 m0, s{sl}, {((j % NOWN) if wh == 0 else (j & 1))*16384+qq*1024}")
                a(f"s_add_u32 s{sOff}, s{sb}, {qq*8192}")
                a(f"buffer_load_dwordx4 v{3+(qq>>1)}, s[{SX}:{SX+3}], s{sOff} offen{XPOL[wh]} lds")
            elif it[0] == "w":
                _, u, h = it
                k, tap = u // 3, u % 3
                a(f"s_add_u32 m0, s{sWl}, {(u%NSLOT)*8192+h*4096}")
                a(f"s_add_u32 s{sOff}, s{RW[k//2]}, {(tap*256+32*(k%2)+16*h)*512}")
                a(f"buffer_load_dwordx4 v5, s[{SW}:{SW+3}], s{sOff} offen{WPOL} lds")
            else:
                a(f"buffer_load_dword v8, v6, s[{SW}:{SW+3}], 0 offen")
            issued.append(it)

        for iv in range(-2, 7):
            nxt_req = req(iv + 2)
            cap = caps[min(iv + 2, len(caps) - 1)]
            cnt = 0
            if iv >= 0 and opt.ldelay:
                a(f"s_sleep {opt.ldelay}")
            while pos < len(stream) and earliest(stream[pos]) <= iv and (cnt < cap or any(r not in issued for r in nxt_req)):
                issue(stream[pos])
                pos += 1
                cnt += 1
                if iv == -2 and cnt == 14:
                    common_late()
                if iv == -2 and STAMP == 3 and cnt == 6:
                    stamp(9)
                    a("s_waitcnt vmcnt(5)")
                    stamp(10)
                    a("s_waitcnt vmcnt(0)")
                    stamp(11)
            if iv == -2 and STAMP == 2:
                stamp(9)
                a(f"s_waitcnt vmcnt({cnt-1})")
                stamp(10)
                a(f"s_waitcnt vmcnt({cnt-5})")
                stamp(11)
            if iv == -1:
                lab = a.newlab("L_sn")
                a(f"s_cmp_lg_u32 s{sWave}, 3")
                a(f"s_cselect_b32 s{sFlagged}, 1, 0")
                a(f"s_cbranch_scc1 {lab}")
                a(f"s_lshl_b32 s{sTmp}, s{sGrp}, 16")
                a(f"s_lshl_b32 s{sTmp2}, s{sTt}, 8")
                a(f"s_add_u32 s{sTmp}, s{sTmp}, s{sTmp2}")
                a("v_lshrrev_b32 v24, 4, v2")
                a("v_lshlrev_b32 v24, 14, v24")
                a("v_and_b32 v25, 15, v2")
                a("v_lshl_add_u32 v24, v25, 4, v24")
                for r in range(28, 32):
                    a(f"v_mov_b32 v{r}, -1")
                a(f"buffer_store_dwordx4 v[28:31], v24, s[{SWS}:{SWS+3}], s{sTmp} offen sc1")
                a(f"buffer_load_dwordx2 v[26:27], off, s[{SDBG}:{SDBG+3}], 0 sc1")
                a.label(lab)
                a("v_min_u32 v18, 62, v2")
                a(f"s_lshl_b32 s{sTmp}, s{sGrp}, 13")
                a(f"s_add_u32 s{sTmp}, s{sTmp}, {RDY}")
                a(f"v_lshl_add_u32 v18, v18, 7, s{sTmp}")
            if iv in (0, 1, 2):
                lproto(cnt, False)
            if iv == 3:
                lproto(0, True) if False else lproto(cnt, False)
            if iv == 6:
                break
            for r in nxt_req:
                assert r in issued, (iv, r)
            if nxt_req:
                last = max(issued.index(r) for r in nxt_req)
                a(f"s_waitcnt vmcnt({min(63, len(issued) - 1 - last)})")
            a("s_barrier")
        assert pos == len(stream), (pos, len(stream))

    for ci, spec in enumerate(specs):
        a.label(f"L_cls{ci}")
        emit_loader(spec)
        if ci + 1 < ncls:
            a("s_branch L_ldone")
    a.label("L_ldone")
    if STAMP:
        stamp(7)
        stamp_dump("0xffc000")
    a(f"s_cmp_lg_u32 s{sWave}, 3")
    a("s_cbranch_scc1 L_cnt_ok")
    lproto(0, True)
    a(f"s_mov_b32 s{sSpin}, 0")
    a.label("L_cnt")
    a(f"buffer_load_dwordx2 v[16:17], v18, s[{SWS}:{SWS+3}], 0 offen sc1")
    a("s_waitcnt vmcnt(0)")
    a("v_cmp_ne_u64 vcc, v[16:17], v[26:27]")
    a("s_cbranch_vccz L_cnt_ok")
    a(f"s_add_u32 s{sSpin}, s{sSpin}, 1")
    a(f"s_cmp_gt_u32 s{sSpin}, {SPIN_MAX}")
    a("s_cbranch_scc1 L_cnt_ok")
    a("s_sleep 4")
    a("s_branch L_cnt")
    a.label("L_cnt_ok")
    H = [64 + 8 * i for i in range(4)]

    def tread_setup():
        a("v_and_b32 v3, 15, v0")
        a("v_lshrrev_b32 v4, 4, v0")
        a("v_lshlrev_b32 v5, 1, v3")
        a("v_lshrrev_b32 v6, 3, v3")
        a("v_xor_b32 v5, v5, v6")
        a("v_lshlrev_b32 v5, 4, v5")
        a("v_lshl_add_u32 v5, v4, 9, v5")
        a("v_xor_b32 v6, 16, v5")
        a(f"s_lshl_b32 s{sTmp}, s{sC}, 8")
        a(f"v_lshl_add_u32 v8, v4, 9, s{sTmp}")
        a("v_lshl_add_u32 v8, v3, 4, v8")
        a("v_add_u32 v4, 96, v4")
        a(f"v_cmp_gt_u32 vcc, s{sNv}, v4")
        a("v_mov_b32 v9, 0x7ff00000")
        a("v_lshlrev_b32 v10, 5, v3")
        a("v_cndmask_b32 v9, v9, v8, vcc")
        a(f"v_add_u32 v10, {PAR}, v10")

    def tread_issue():
        for i in range(4):
            a(f"ds_read_b128 v[{H[i]}:{H[i]+3}], v5 offset:{i*16384}")
            a(f"ds_read_b128 v[{H[i]+4}:{H[i]+7}], v6 offset:{i*16384}")

    a("s_waitcnt lgkmcnt(0)")
    tread_setup()
    a("s_barrier")
    a("s_barrier")
    tread_issue()
    a("s_barrier")
    a("s_branch L_epi")

    a.label("L_compute")
    if opt.prio:
        a(f"s_setprio {opt.prio}")
    P = [64, 96]
    Q = [128, 160]
    FB = [[192 + 24 * s + 4 * i for i in range(6)] for s in range(2)]
    NAG = 4
    FA = [[8 + 8 * g, 12 + 8 * g] for g in range(NAG)]
    vA = [[[40, 41], [42, 43]], [[248, 249], [250, 251]]]
    vA0 = 252
    sAo = [[56, 57, 58, 59], [60, 61, 62, 63]]
    vB = [44, 45]
    vSl, vG, vBe = 46, 47, 48
    vT = [49, 50]
    vFl, vDn, vPar = 51, 52, 53
    vPo, vPo15 = 54, 55
    vF = 56
    vt = [240 + i for i in range(8)]

    def code_prefetch():
        lab = a.newlab("L_ncp")
        a(f"s_cmp_lg_u32 s{sWave}, 3")
        a(f"s_cbranch_scc1 {lab}")
        a(f"s_getpc_b64 s[{sPc}:{sPc+1}]")
        a.label("L_pcref")
        a(f"s_sub_u32 s{sPc}, s{sPc}, L_pcref-{NAME}_kernel")
        a(f"s_subb_u32 s{sPc+1}, s{sPc+1}, 0")
        a(f"s_bfe_u32 s{sTmp}, s2, 0x50003")
        a(f"s_mul_i32 s{sTmp}, s{sTmp}, {opt.cpf*64}")
        a(f"v_min_u32 v3, {opt.cpf-1}, v2")
        a(f"v_lshl_add_u32 v3, v3, 6, s{sTmp}")
        a(f"v_min_u32 v3, L_codeend-{NAME}_kernel-4, v3")
        a(f"global_load_dword v61, v3, s[{sPc}:{sPc+1}]")
        a.label(lab)

    if opt.cpf:
        code_prefetch()
    a("v_bfe_u32 v3, v2, 2, 2")
    a("v_and_b32 v4, 1, v2")
    a("v_lshl_add_u32 v3, v3, 1, v4")
    a("v_bfe_u32 v4, v2, 1, 1")
    a("v_lshl_add_u32 v4, v3, 4, v4")
    a("v_lshrrev_b32 v5, 4, v2")
    a("v_xor_b32 v3, v3, v5")
    a("v_lshlrev_b32 v3, 4, v3")
    a(f"v_lshl_add_u32 v{vA0}, v4, 7, v3")
    a(f"s_cmp_eq_u32 s{sC}, 0")
    for jj in range(4):
        a(f"s_mov_b32 s{sTmp}, {(jj % NOWN)*16384}")
        a(f"s_mov_b32 s{sTmp2}, {PART+(jj&1)*16384}")
        a(f"s_cselect_b32 s{sAo[0][jj]}, s{sTmp}, s{sTmp2}")
        a(f"s_cselect_b32 s{sAo[1][jj]}, s{sTmp2}, s{sTmp}")

    def set_abase(jj):
        for e in range(2):
            a(f"v_add_u32 v{vA[jj&1][e][0]}, s{sAo[e][jj]}, v{vA0}")
            a(f"v_xor_b32 v{vA[jj&1][e][1]}, 64, v{vA[jj&1][e][0]}")

    set_abase(0)
    set_abase(1)
    a("v_bfe_u32 v3, v2, 2, 2")
    a("v_lshl_add_u32 v4, v5, 3, v3")
    a("v_lshlrev_b32 v4, 8, v4")
    a("v_and_b32 v6, 1, v5")
    a("v_lshl_add_u32 v3, v6, 2, v3")
    a(f"s_lshl_b32 s{sTmp}, s{sWave}, 1")
    a(f"v_xor_b32 v3, s{sTmp}, v3")
    a("v_lshl_add_u32 v4, v3, 5, v4")
    a("v_and_b32 v3, 3, v2")
    a("v_lshl_add_u32 v4, v3, 3, v4")
    a(f"v_add_u32 v{vB[0]}, {RING}, v4")
    a(f"v_xor_b32 v{vB[1]}, 32, v{vB[0]}")
    vB2 = [253, 60]
    a(f"v_add_u32 v{vB2[0]}, 0x8000, v{vB[0]}")
    a(f"v_add_u32 v{vB2[1]}, 0x8000, v{vB[1]}")
    a("v_and_b32 v3, 15, v2")
    a(f"s_lshl_b32 s{sTmp}, s{sWave}, 5")
    a(f"v_add_u32 v3, s{sTmp}, v3")
    a("v_lshrrev_b32 v4, 2, v3")
    a("v_bfe_u32 v6, v3, 6, 1")
    a("v_xor_b32 v4, v4, v6")
    a("v_lshlrev_b32 v4, 4, v4")
    a("v_and_b32 v6, 3, v3")
    a("v_lshl_add_u32 v4, v6, 2, v4")
    a(f"v_lshl_add_u32 v{vT[0]}, v5, 14, v4")
    a(f"v_add_u32 v{vT[1]}, 64, v{vT[0]}")
    a(f"s_mov_b32 s{sMask3}, 0")
    a(f"s_mov_b32 s{sMask3+1}, 0xffff0000")
    a(f"s_mov_b32 s{sMaskLast}, 0")
    a(f"s_cmp_eq_u32 s{sTt}, {NTILE-1}")
    a(f"s_cselect_b32 s{sMaskLast+1}, s{sMask3+1}, 0")
    a(f"s_mov_b32 s{sMaskG1}, 0xffff0000")
    a(f"s_mov_b32 s{sMaskG1+1}, 0")
    a("s_waitcnt lgkmcnt(0)")
    common_late()
    a(f"s_lshl_b32 s{sSlot}, s{sGrp}, 2")
    a(f"s_add_u32 s{sSlot}, s{sSlot}, s{sWave}")
    a(f"s_lshl_b32 s{sSlot}, s{sSlot}, 14")
    a(f"s_lshl_b32 s{sTmp}, s{sTt}, 8")
    a(f"s_add_u32 s{sTmp}, s{sTmp}, s{sSlot}")
    a(f"v_lshl_add_u32 v{vSl}, v2, 2, s{sTmp}")
    sN = sAny
    a(f"s_mov_b64 s[{sN}:{sN+1}], {1 if opt.nononce else 0}")
    a(f"s_cmp_lg_u32 s{sWave}, 0")
    a("s_cbranch_scc1 L_nosent")
    a("s_cmp_lg_u32 s2, 0" if not opt.nononce else "s_cmp_eq_u32 s2, s2")
    a("s_cbranch_scc1 L_nonon")
    a(f"s_memrealtime s[{sN}:{sN+1}]")
    a("v_lshlrev_b32 v3, 6, v2")
    a("s_waitcnt lgkmcnt(0)")
    a(f"s_or_b32 s{sN}, s{sN}, 1")
    a(f"v_mov_b32 v{vt[0]}, s{sN}")
    a(f"v_mov_b32 v{vt[1]}, s{sN+1}")
    a("s_mov_b64 exec, 1")
    a(f"buffer_store_dwordx2 v[{vt[0]}:{vt[1]}], off, s[{SDBG}:{SDBG+3}], 0 sc1")
    a("s_mov_b64 exec, -1")
    a.label("L_nonon")
    a.label("L_nosent")
    a(f"s_mov_b32 s{sSent}, s{sTmp}")
    srd(SG, 8, 512)
    srd(SB, 10, 512)
    if STAMP:
        a("v_writelane_b32 v63, s94, 0")
        a("v_writelane_b32 v63, s96, 1")
    for i in range(4):
        a(f"s_add_u32 s{sPoll+i}, s{sSlot}, {i*4096}")
    a("v_and_b32 v3, 7, v2")
    a("v_lshlrev_b32 v3, 2, v3")
    a("v_lshrrev_b32 v4, 4, v2")
    a("v_add_u32 v3, v3, v4")
    a(f"s_lshl_b32 s{sTmp}, s{sWave}, 5")
    a(f"v_add_u32 v3, s{sTmp}, v3")
    a(f"v_lshlrev_b32 v{vPar}, 2, v3")
    a(f"v_add_u32 v{vPar}, {PAR}, v{vPar}")
    a(f"s_lshl_b32 s{sTmp}, s{sC}, 7")
    a(f"v_add_lshl_u32 v3, v3, s{sTmp}, 1")
    a(f"buffer_load_ushort v{vBe}, v3, s[{SB}:{SB+3}], 0 offen")
    a(f"buffer_load_ushort v{vG}, v3, s[{SG}:{SG+3}], 0 offen")
    a(f"v_lshlrev_b32 v{vPo}, 4, v2")
    a(f"v_cmp_gt_u32 vcc, 48, v2")
    a(f"v_mov_b32 v{vt[5]}, 0x7ff00000")
    a("s_nop 0")
    a(f"v_cndmask_b32 v{vPo15}, v{vt[5]}, v{vPo}, vcc")
    a(f"s_cmp_lg_u32 s{sWave}, 0")
    a(f"s_cselect_b32 s{sFlagged}, 1, 0")
    vN = 254

    def proto_start():
        lab = a.newlab("L_ps")
        a(f"s_cmp_lg_u32 s{sFlagged}, 0")
        a(f"s_cbranch_scc1 {lab}")
        a("v_lshrrev_b32 v3, 4, v2")
        a("v_lshlrev_b32 v3, 14, v3")
        a("v_and_b32 v4, 15, v2")
        a("v_lshl_add_u32 v3, v4, 4, v3")
        for r in range(4):
            a(f"v_mov_b32 v{vt[r]}, -1")
        a(f"buffer_store_dwordx4 v[{vt[0]}:{vt[3]}], v3, s[{SWS}:{SWS+3}], s{sSent} offen sc1")
        a(f"buffer_load_dwordx2 v[{vN}:{vN+1}], off, s[{SDBG}:{SDBG+3}], 0 sc1")
        a.label(lab)

    def proto_step(blocking):
        lab, top, again = a.newlab("L_pt"), a.newlab("L_ptt"), a.newlab("L_pta")
        a(f"s_cmp_lg_u32 s{sFlagged}, 0")
        a(f"s_cbranch_scc1 {lab}")
        if not blocking:
            a(f"s_getreg_b32 s{sTmp}, hwreg(HW_REG_IB_STS, 0, 4)")
            a(f"s_cmp_lg_u32 s{sTmp}, 0")
            a(f"s_cbranch_scc1 {lab}")
        else:
            a(f"s_mov_b32 s{sSpin}, 0")
        a.label(top)
        a("s_waitcnt vmcnt(0)")
        if opt.nononce:
            a(f"v_mov_b32 v{vN}, 1")
            a(f"v_mov_b32 v{vN+1}, 0")
            a("s_nop 0")
        a(f"v_readfirstlane_b32 s{sTmp}, v{vN}")
        a(f"s_cmp_eq_u32 s{sTmp}, 0")
        a(f"s_cbranch_scc1 {again}")
        a(f"v_mov_b32 v3, {NON}")
        a(f"s_lshl_b32 s{sTmp}, s{sGrp}, 6")
        a(f"s_add_u32 s{sTmp}, s{sTmp}, s{sTt}")
        a(f"s_lshl_b32 s{sTmp}, s{sTmp}, 7")
        a(f"s_add_u32 s{sTmp}, s{sTmp}, {RDY}")
        a("s_mov_b64 exec, 1")
        a(f"ds_write_b64 v3, v[{vN}:{vN+1}]")
        a(f"buffer_store_dwordx2 v[{vN}:{vN+1}], off, s[{SWS}:{SWS+3}], s{sTmp} sc1")
        a("s_mov_b64 exec, -1")
        a(f"s_mov_b32 s{sFlagged}, 1")
        a(f"s_branch {lab}")
        a.label(again)
        a(f"buffer_load_dwordx2 v[{vN}:{vN+1}], off, s[{SDBG}:{SDBG+3}], 0 sc1")
        if blocking:
            a(f"s_add_u32 s{sSpin}, s{sSpin}, 1")
            a(f"s_cmp_le_u32 s{sSpin}, {SPIN_MAX}")
            a(f"s_cbranch_scc1 {top}")
        a.label(lab)

    lds = {"n": 0, "done": -1}
    prod = {}

    def ldsop(txt, dst=None):
        if (opt.noa and txt.startswith("ds_read_b128")) or (opt.nob and txt.startswith("ds_read_b64_tr")):
            return
        if opt.nomfma and (txt.startswith("ds_read_b64_tr") or (txt.startswith("ds_read_b128") and dst != vF)):
            return
        a(txt)
        if dst is not None:
            prod[dst] = lds["n"]
        lds["n"] += 1

    def need(regs):
        if opt.nowait:
            return
        idx = max(prod[r] for r in regs)
        if idx > lds["done"]:
            cnt = lds["n"] - 1 - idx
            a(f"s_waitcnt lgkmcnt({min(cnt,15)})")
            lds["done"] = idx if cnt <= 15 else lds["n"] - 1 - 15

    def a_reads(k, mb):
        j, ks2 = k // 2, k % 2
        g = (8 * k + mb) % NAG
        out = []
        for e in range(2):
            out.append((f"ds_read_b128 v[{FA[g][e]}:{FA[g][e]+3}], v{vA[j&1][e][ks2]} offset:{mb*256}", FA[g][e]))
        return out

    def b_reads(k, tap):
        u = 3 * k + tap
        out = []
        for nb in range(2):
            d = FB[k & 1][tap * 2 + nb]
            for t in range(2):
                sl = u % NSLOT
                vb, off = (vB[nb], sl * 8192) if sl < 4 else (vB2[nb], sl * 8192 - 0x8000)
                out.append((f"ds_read_b64_tr_b16 v[{d+2*t}:{d+2*t+1}], v{vb} offset:{off+t*1024}", (d, t)))
        return out

    def check_level(lvl, prefetched):
        lab, ok = a.newlab("L_lv"), a.newlab("L_lvok")
        if prefetched:
            need([vF])
            a(f"v_min3_u32 v{vF}, v{vF}, v{vF+1}, v{vF+2}")
            a(f"v_min_u32 v{vF}, v{vF}, v{vF+3}")
            a(f"v_cmp_le_u32 vcc, {lvl}, v{vF}")
            a(f"s_cbranch_vccnz {ok}")
        a(f"s_mov_b32 s{sSpin}, 0")
        a.label(lab)
        a(f"s_add_u32 s{sSpin}, s{sSpin}, 1")
        a(f"s_cmp_gt_u32 s{sSpin}, {SPIN_MAX*8}")
        a(f"s_cbranch_scc1 {ok}")
        a(f"ds_read_b128 v[{vF}:{vF+3}], v{vFl}")
        a("s_waitcnt lgkmcnt(0)")
        a(f"v_min3_u32 v{vF}, v{vF}, v{vF+1}, v{vF+2}")
        a(f"v_min_u32 v{vF}, v{vF}, v{vF+3}")
        a(f"v_cmp_le_u32 vcc, {lvl}, v{vF}")
        a(f"s_cbranch_vccz {lab}")
        a.label(ok)
        trace(f"lv{lvl}")

    def mf(d, fa, fb, zero):
        if opt.nomfma:
            return
        c = "0" if zero else f"v[{d}:{d+3}]"
        need([fa, (fb, 0), (fb, 1)])
        if opt.fixop:
            fa, fb = 240, 244
        a(f"v_mfma_f32_16x16x32_bf16 v[{d}:{d+3}], v[{fa}:{fa+3}], v[{fb}:{fb+3}], {c}")

    def done_write(val):
        if opt.nodone:
            return
        a(f"v_mov_b32 v{vt[6]}, {val}")
        ldsop(f"ds_write_b32 v{vDn}, v{vt[6]}")

    a("s_barrier")
    stamp(1, vt[0], vt[1])
    for tap in range(3):
        for r in b_reads(0, tap):
            ldsop(*r)
        if tap == 0:
            for r in a_reads(0, 0):
                ldsop(*r)
    PD = opt.pd
    for g in range(1, PD):
        for r in a_reads(0, g):
            ldsop(*r)
    CHK = opt.chk
    BSP = opt.bsp
    assert CHK + BSP <= 8 and CHK <= 8 - PD
    for k in range(8):
        a.c(f"---- step {k}")
        fb = FB[k & 1]
        bq = []
        if k < 7:
            for tap in range(3):
                bq += [("l", r) for r in b_reads(k + 1, tap)]
        for mb in range(8):
            g = (8 * k + mb) % NAG
            E, O = FA[g]
            z = k == 0
            if opt.chain:
                seq = [(P[0] + 4 * mb, E, fb[0], z), (P[0] + 4 * mb, O, fb[2], False), (P[1] + 4 * mb, O, fb[3], z),
                       (P[1] + 4 * mb, E, fb[1], False), (Q[1] + 4 * mb, E, fb[5], z), (Q[0] + 4 * mb, E, fb[4], z)]
                gaps = [1, 3, 4, 5] if opt.chain == 2 else [0, 1, 2, 3, 4, 5]
            else:
                seq = [(P[0] + 4 * mb, E, fb[0], z), (P[1] + 4 * mb, E, fb[1], z), (Q[0] + 4 * mb, E, fb[4], z),
                       (Q[1] + 4 * mb, E, fb[5], z), (P[0] + 4 * mb, O, fb[2], False), (P[1] + 4 * mb, O, fb[3], False)]
                gaps = [0, 1, 2, 3, 4, 5]
            side = []
            nx = 8 * k + mb + PD
            if nx < 64:
                side += [("l", r) for r in a_reads(nx // 8, nx % 8)]
            if k < 7 and CHK <= mb < CHK + BSP:
                left = CHK + BSP - mb
                tk = (len(bq) + left - 1) // left
                side += bq[:tk]
                bq = bq[tk:]
            if mb == 0 and k in (2, 4):
                set_abase(k // 2 + 1)
            need([E, O])
            for i in range(6):
                mf(*seq[i])
                if k < 7 and mb == CHK and i == (1 if opt.chain else 0):
                    a("s_barrier")
                if i in gaps and not (k < 7 and mb == CHK and opt.chain and i == 0):
                    rem = len([g_ for g_ in gaps if g_ >= i])
                    take = (len(side) + rem - 1) // rem
                    for _ in range(take):
                        kind, r = side.pop(0)
                        ldsop(*r)
            assert not side
    stamp(2, vt[0], vt[1])
    Zr = [vt[0], vt[2]]
    zops = [
        [f"v_mov_b32 v{vt[2*nb]}, v{Q[nb]}" for nb in range(2)],
        [],
        [f"v_permlane16_swap_b32 v{Q[nb]}, v{vt[2*nb]}" for nb in range(2)],
        [f"v_mov_b32 v{vt[2*nb+1]}, v{Q[nb]}" for nb in range(2)],
        [f"v_permlane32_swap_b32 v{Q[nb]}, v{vt[2*nb+1]}" for nb in range(2)],
        [f"v_cndmask_b32 v{vt[2*nb]}, v{vt[2*nb]}, v{vt[2*nb+1]}, s[{sMaskG1}:{sMaskG1+1}]" for nb in range(2)],
    ]
    SA = [[192, 196], [200, 204]]

    def hadd(nb, r):
        p, q = P[nb], Q[nb]
        if r < 30:
            a(f"v_pk_add_f32 v[{p+r}:{p+r+1}], v[{p+r}:{p+r+1}], v[{q+r+2}:{q+r+3}]")
            if r in (26, 28):
                a(f"v_cndmask_b32 v{p+r+1}, v{p+r+1}, 0, s[{sMaskLast}:{sMaskLast+1}]")
        else:
            a(f"v_add_f32 v{p+30}, v{p+30}, v{q+1}")
            a(f"v_add_f32 v{p+31}, v{p+31}, v{Zr[nb]}")
            a(f"v_cndmask_b32 v{p+31}, v{p+31}, 0, s[{sMask3}:{sMask3+1}]")

    def acc(nb, r):
        p = P[nb]
        s1, s2 = SA[nb]
        o = 2 * ((r >> 1) & 1)
        x = f"v[{p+r}:{p+r+1}]"
        if r < 4:
            a(f"v_pk_mul_f32 v[{s2+o}:{s2+o+1}], {x}, {x}")
        else:
            a(f"v_pk_fma_f32 v[{s2+o}:{s2+o+1}], {x}, {x}, v[{s2+o}:{s2+o+1}]")
        if r in (4, 6):
            a(f"v_pk_add_f32 v[{s1+o}:{s1+o+1}], v[{p+r-4}:{p+r-3}], {x}")
        elif r >= 8:
            a(f"v_pk_add_f32 v[{s1+o}:{s1+o+1}], v[{s1+o}:{s1+o+1}], {x}")

    for r in range(0, 36, 2):
        for nb in range(2):
            if r < 32:
                hadd(nb, r)
        for nb in range(2):
            if r >= 4:
                acc(nb, r - 4)
        if r < len(zops) * 2 and zops[r // 2]:
            for t_ in zops[r // 2]:
                a(t_)
    for nb in range(2):
        for st in range(2):
            s_ = SA[nb][st]
            a(f"v_pk_add_f32 v[{s_}:{s_+1}], v[{s_}:{s_+1}], v[{s_+2}:{s_+3}]")
    for nb in range(2):
        for st in range(2):
            s_ = SA[nb][st]
            a(f"v_add_f32 v{s_}, v{s_}, v{s_+1}")

    def reduce4(v0_, v1_, v2_, v3_):
        a("s_nop 1")
        a(f"v_permlane16_swap_b32 v{v0_}, v{v1_}")
        a(f"v_permlane16_swap_b32 v{v2_}, v{v3_}")
        a("s_nop 1")
        a(f"v_add_f32 v{v0_}, v{v0_}, v{v1_}")
        a(f"v_add_f32 v{v2_}, v{v2_}, v{v3_}")
        a("s_nop 1")
        a(f"v_permlane32_swap_b32 v{v0_}, v{v2_}")
        a("s_nop 1")
        a(f"v_add_f32 v{v0_}, v{v0_}, v{v2_}")

    reduce4(SA[0][0], SA[1][0], SA[0][1], SA[1][1])
    S1 = SA[0][0]
    a(f"v_cmp_eq_u32 vcc, -1, v{S1}")
    a(f"v_mov_b32 v{S1+1}, 0x7fc00000")
    a("s_nop 0")
    a(f"v_cndmask_b32 v{S1}, v{S1}, v{S1+1}, vcc")
    a(f"buffer_store_dword v{S1}, v{vSl}, s[{SWS}:{SWS+3}], 0 offen sc1")
    stamp(3, vt[0], vt[1])
    trace("pub")
    trace_dump(1)
    a("s_barrier")
    PL = [128 + 4 * m for m in range(16)]

    def poll_load(m):
        vo = vPo15 if m == 15 else vPo
        return f"buffer_load_dwordx4 v[{PL[m]}:{PL[m]+3}], v{vo}, s[{SWS}:{SWS+3}], s{sPoll+(m>>2)} offen offset:{(m&3)*1024} sc1"

    def t_writes():
        for nb in range(2):
            for r in range(0, 32, 2):
                o0 = (r >> 1) * 2
                a(f"ds_write2st64_b32 v{vT[nb]}, v{P[nb]+r}, v{P[nb]+r+1} offset0:{o0} offset1:{o0+32}")

    if opt.twoph:
        a(f"s_bfe_u32 s{sTmp}, s2, 0x30004")
        a(f"s_lshl_b32 s{sTmp}, s{sTmp}, 10")
        a(f"s_add_u32 s{sTmp}, s{sTmp}, s{sSlot}")
        a(f"s_add_u32 s{sTmp2}, s{sTmp}, 8192")
        a(f"buffer_load_dwordx4 v[{PL[0]}:{PL[0]+3}], v{vPo}, s[{SWS}:{SWS+3}], s{sTmp} offen sc1")
        a(f"buffer_load_dwordx4 v[{PL[1]}:{PL[1]+3}], v{vPo}, s[{SWS}:{SWS+3}], s{sTmp2} offen sc1")
        t_writes()
        tread_setup()
        a("s_waitcnt lgkmcnt(0)")
        a("s_barrier")
        tread_issue()
        if opt.twoph == 2:
            a("s_waitcnt vmcnt(0)")
        for m in range(16):
            a(poll_load(m))
    else:
        if opt.pollfirst == 1:
            for m in range(16):
                a(poll_load(m))
            t_writes()
        elif opt.pollfirst == 0:
            t_writes()
            for m in range(16):
                a(poll_load(m))
        else:
            t_writes()
        tread_setup()
        a("s_waitcnt lgkmcnt(0)")
        if opt.pollfirst == 2:
            for m in range(16):
                a(poll_load(m))
        a("s_barrier")
        if opt.pollfirst == 3:
            for m in range(16):
                a(poll_load(m))
        tread_issue()
        if opt.pollfirst == 4:
            a("s_waitcnt lgkmcnt(0)")
            for m in range(16):
                a(poll_load(m))
    PM = [4 + 2 * i for i in range(12)] + [40 + 2 * i for i in range(4)]
    a(f"s_mov_b32 s{sSpin}, 0")
    a("s_waitcnt vmcnt(0)")
    for m in range(16):
        a(f"v_max3_u32 v{vt[m&3]}, v{PL[m]}, v{PL[m]+1}, v{PL[m]+2}")
        a(f"v_max_u32 v{vt[m&3]}, v{vt[m&3]}, v{PL[m]+3}")
        a(f"v_cmp_eq_u32 s[{PM[m]}:{PM[m]+1}], -1, v{vt[m&3]}")
    a.label("L_poll")
    a(f"s_or_b64 s[{sAny}:{sAny+1}], s[{PM[0]}:{PM[0]+1}], s[{PM[1]}:{PM[1]+1}]")
    for m in range(2, 16):
        a(f"s_or_b64 s[{sAny}:{sAny+1}], s[{sAny}:{sAny+1}], s[{PM[m]}:{PM[m]+1}]")
    a("s_cbranch_scc0 L_pdone")
    a(f"s_add_u32 s{sSpin}, s{sSpin}, 1")
    a(f"s_cmp_gt_u32 s{sSpin}, {SPIN_MAX}")
    a("s_cbranch_scc1 L_pdone")
    for m in range(16):
        lab = a.newlab("L_pl")
        a(f"s_mov_b64 exec, s[{PM[m]}:{PM[m]+1}]")
        a(f"s_cbranch_execz {lab}")
        a(poll_load(m))
        a.label(lab)
    a("s_waitcnt vmcnt(0)")
    for m in range(16):
        lab = a.newlab("L_pc")
        a(f"s_mov_b64 exec, s[{PM[m]}:{PM[m]+1}]")
        a(f"s_cbranch_execz {lab}")
        a(f"v_max3_u32 v{vt[0]}, v{PL[m]}, v{PL[m]+1}, v{PL[m]+2}")
        a(f"v_max_u32 v{vt[0]}, v{vt[0]}, v{PL[m]+3}")
        a(f"v_cmp_eq_u32 s[{PM[m]}:{PM[m]+1}], -1, v{vt[0]}")
        a.label(lab)
    a("s_mov_b64 exec, -1")
    a("s_branch L_poll")
    a.label("L_pdone")
    a("s_mov_b64 exec, -1")
    stamp(4, vt[0], vt[1])
    step = 1
    while step < 16:
        for m in range(0, 16, 2 * step):
            for hh in range(2):
                d, s_ = PL[m] + 2 * hh, PL[m + step] + 2 * hh
                a(f"v_pk_add_f32 v[{d}:{d+1}], v[{d}:{d+1}], v[{s_}:{s_+1}]")
        step *= 2
    v0_, v1_, v2_, v3_ = PL[0], PL[0] + 1, PL[0] + 2, PL[0] + 3
    reduce4(v0_, v1_, v2_, v3_)
    a("s_nop 1")
    a(f"v_mov_b32_dpp v{v1_}, v{v0_} row_ror:8 row_mask:0xf bank_mask:0xf")
    c1 = -2.0 * math.sqrt(2.0 / math.pi) * math.log2(math.e)
    c2 = c1 * 0.044715
    sc = -((-c2) ** (1.0 / 3.0))
    a(f"v_mul_f32 v{v0_}, {hex(f2u(1.0/L_OUT))}, v{v0_}")
    a(f"v_mul_f32 v{v1_}, {hex(f2u(1.0/L_OUT))}, v{v1_}")
    a(f"v_fma_f32 v{v1_}, -v{v0_}, v{v0_}, v{v1_}")
    a(f"v_max_f32 v{v1_}, 0, v{v1_}")
    a(f"v_add_f32 v{v1_}, {hex(f2u(1e-5))}, v{v1_}")
    a(f"v_rsq_f32 v{v1_}, v{v1_}")
    a(f"v_lshlrev_b32 v{vG}, 16, v{vG}")
    a(f"v_lshlrev_b32 v{vBe}, 16, v{vBe}")
    a(f"v_mul_f32 v{vG}, {hex(f2u(sc))}, v{vG}")
    a(f"v_mul_f32 v{vBe}, {hex(f2u(sc))}, v{vBe}")
    a(f"v_mul_f32 v{v1_}, v{v1_}, v{vG}")
    a(f"v_fma_f32 v{v0_}, -v{v0_}, v{v1_}, v{vBe}")
    a(f"s_mov_b32 s{sTmp}, 0x00ff00ff")
    a(f"s_mov_b32 exec_lo, s{sTmp}")
    a(f"s_mov_b32 exec_hi, s{sTmp}")
    a(f"ds_write2_b32 v{vPar}, v{v1_}, v{v0_} offset0:0 offset1:128")
    a("s_mov_b64 exec, -1")
    a("s_waitcnt lgkmcnt(0)")
    a("s_barrier")

    a.label("L_epi")
    SCL, SHF = 16, 24
    a(f"ds_read_b128 v[{SCL}:{SCL+3}], v10")
    a(f"ds_read_b128 v[{SCL+4}:{SCL+7}], v10 offset:16")
    a(f"ds_read_b128 v[{SHF}:{SHF+3}], v10 offset:512")
    a(f"ds_read_b128 v[{SHF+4}:{SHF+7}], v10 offset:528")
    k1 = c1 / sc
    a(f"s_mov_b32 s{sK}, {hex(f2u(k1))}")
    a(f"s_mov_b32 s{sK+1}, {hex(f2u(k1))}")
    a(f"s_mov_b32 s{sK+2}, {hex(f2u(sc))}")
    a(f"s_mov_b32 s{sK+3}, {hex(f2u(sc))}")
    a("s_waitcnt lgkmcnt(0)")
    W_, O_ = 32, 48
    for i in range(4):
        h = H[i]
        w_ = W_ + 8 * (i & 1)
        o_ = O_ + 4 * (i & 1)
        for p in range(4):
            a(f"v_pk_fma_f32 v[{h+2*p}:{h+2*p+1}], v[{h+2*p}:{h+2*p+1}], v[{SCL+2*p}:{SCL+2*p+1}], v[{SHF+2*p}:{SHF+2*p+1}]")
        for p in range(4):
            a(f"v_pk_fma_f32 v[{w_+2*p}:{w_+2*p+1}], v[{h+2*p}:{h+2*p+1}], v[{h+2*p}:{h+2*p+1}], s[{sK}:{sK+1}]")
        for p in range(4):
            a(f"v_pk_mul_f32 v[{w_+2*p}:{w_+2*p+1}], v[{w_+2*p}:{w_+2*p+1}], v[{h+2*p}:{h+2*p+1}]")
        for e in range(8):
            a(f"v_exp_f32 v{w_+e}, v{w_+e}")
        for p in range(4):
            a(f"v_pk_fma_f32 v[{w_+2*p}:{w_+2*p+1}], v[{w_+2*p}:{w_+2*p+1}], s[{sK+2}:{sK+3}], s[{sK+2}:{sK+3}]")
        for e in range(8):
            a(f"v_rcp_f32 v{w_+e}, v{w_+e}")
        for p in range(4):
            a(f"v_pk_mul_f32 v[{w_+2*p}:{w_+2*p+1}], v[{w_+2*p}:{w_+2*p+1}], v[{h+2*p}:{h+2*p+1}]")
        for p in range(4):
            a(f"v_cvt_pk_bf16_f32 v{o_+p}, v{w_+2*p}, v{w_+2*p+1}")
        vo = 9 if i == 3 else 8
        a(f"buffer_store_dwordx4 v[{o_}:{o_+3}], v{vo}, s[{SO}:{SO+3}], s{sOutB+i} offen{ONT}")
    if STAMP:
        a("v_lshrrev_b32 v60, 6, v0")
        a(f"v_cmp_eq_u32 vcc, {max(opt.stampw,0)}, v60")
        a("s_cbranch_vccz L_end")
        stamp(5)
        a("s_waitcnt vmcnt(0)")
        stamp(6)
        stamp_dump("0x3fff")
    a.label("L_end")
    a("s_endpgm")
    a.label("L_codeend")

    hdr = open("cdna_kernels/%s.s.ref" % NAME).read().split("\n")
    head = []
    for ln in hdr:
        if ln.startswith("; @launch"):
            head.append("; @launch grid=(254,1,1) block=(512,1,1) lds=163840")
            break
        head.append(ln)
    out = "\n".join(head) + "\n"
    out += f""".amdgcn_target "amdgcn-amd-amdhsa--gfx950"
.text
.globl {NAME}_kernel
.p2align 8
.type {NAME}_kernel,@function
{NAME}_kernel:
"""
    out += a.text()
    out += f""".section .rodata,"a"
.p2align 6
.amdhsa_kernel {NAME}_kernel
  .amdhsa_next_free_vgpr 256
  .amdhsa_next_free_sgpr 102
  .amdhsa_accum_offset 256
  .amdhsa_group_segment_fixed_size 0
  .amdhsa_kernarg_size 56
  .amdhsa_user_sgpr_count 2
  .amdhsa_user_sgpr_kernarg_segment_ptr 1
  .amdhsa_system_sgpr_workgroup_id_x 1
.end_amdhsa_kernel
"""
    return out


def parse(argv=None):
    ap = argparse.ArgumentParser()
    ap.add_argument("-o", default="cdna_kernels/%s.s" % NAME)
    ap.add_argument("--stamp", type=int, default=0)
    ap.add_argument("--skipdma", type=int, default=0)
    ap.add_argument("--sleep", type=int, default=1)
    ap.add_argument("--nomfma", type=int, default=0)
    ap.add_argument("--rot", type=int, default=1)
    ap.add_argument("--freerun", type=int, default=0)
    ap.add_argument("--trace", type=int, default=0)
    ap.add_argument("--nononce", type=int, default=0)
    ap.add_argument("--xpol", default="nt,nt")
    ap.add_argument("--nown", type=int, default=4)
    ap.add_argument("--nocheck", type=int, default=0)
    ap.add_argument("--prio", type=int, default=0)
    ap.add_argument("--lprio", type=int, default=0)
    ap.add_argument("--bsp", type=int, default=5)
    ap.add_argument("--esleep", type=int, default=1)
    ap.add_argument("--stampw", type=int, default=-1)
    ap.add_argument("--fl_ahead", type=int, default=2)
    ap.add_argument("--ntry", default="16,30,44")
    ap.add_argument("--nowait", type=int, default=0)
    ap.add_argument("--nodone", type=int, default=0)
    ap.add_argument("--ldvgpr", type=int, default=0)
    ap.add_argument("--nopub", type=int, default=0)
    ap.add_argument("--noa", type=int, default=0)
    ap.add_argument("--nob", type=int, default=0)
    ap.add_argument("--fixop", type=int, default=0)
    ap.add_argument("--lregion", type=int, default=-1)
    ap.add_argument("--caps", default="20,10,12")
    ap.add_argument("--ldelay", type=int, default=0)
    ap.add_argument("--chain", type=int, default=0)
    ap.add_argument("--twoph", type=int, default=0)
    ap.add_argument("--wpol", default="-")
    ap.add_argument("--xnt", type=int, default=1)
    ap.add_argument("--wpf", type=int, default=1)
    ap.add_argument("--wpf_pos", type=int, default=0)
    ap.add_argument("--cpf", type=int, default=10)
    ap.add_argument("--ostore", default="sc0+sc1")
    ap.add_argument("--order", default="H0 W0 L0 P H1+W1 H2+W2 L1 H3+W3 L2 W4 W5 L3 W6 W7")
    ap.add_argument("--depth", type=int, default=6)
    ap.add_argument("--throttle", type=int, default=0)
    ap.add_argument("--pd", type=int, default=3)
    ap.add_argument("--chk", type=int, default=2)
    ap.add_argument("--pollfirst", type=int, default=1)
    o = ap.parse_args(argv)
    if o.ostore:
        o.ostore = " " + o.ostore.replace("+", " ")
    return o


if __name__ == "__main__":
    o = parse()
    open(o.o, "w").write(gen(o))
```

```python
import sys, math, struct, argparse

NAME = "standalone__self_sup_conv_stem_wavlm__speech"
L_OUT = 7999
TR = 127
NTILE = 63
XB_BATCH = 16000 * 512
X_BYTES = 2 * XB_BATCH
W_BYTES = 3 * 256 * 256 * 2
OUT_BYTES = 2 * L_OUT * 512
FLG = 163840
PAR = 65536
RDY = 0x40000
SPIN_MAX = 200000


def f2u(f):
    return struct.unpack("<I", struct.pack("<f", f))[0]


class Asm:
    def __init__(self):
        self.lines = []
        self.lab = 0

    def __call__(self, s):
        self.lines.append("    " + s)

    def label(self, n):
        self.lines.append(n + ":")

    def newlab(self, p="L"):
        self.lab += 1
        return f"{p}_{self.lab}"

    def c(self, s):
        self.lines.append("    ; " + s)

    def text(self):
        return "\n".join(self.lines) + "\n"


def xslot(kind, j):
    return 2 * (j % 3) + (0 if kind == "E" else 1)


def build_stream(spec):
    def X(which, j):
        return [("x", which, j, qq) for qq in range(4)]

    def Wu(u):
        return [("w", u, 0), ("w", u, 1)]

    def one(t):
        if t == "P":
            return [("pf",)]
        if t == "F":
            return [("fl",)]
        n = int(t[1:])
        if t[0] == "H":
            return X(0, n)
        if t[0] == "L":
            return X(1, n)
        if t[0] == "W":
            return Wu(3 * n) + Wu(3 * n + 1) + Wu(3 * n + 2)
        if t[0] == "U":
            return Wu(n)
        raise ValueError(t)

    def mix(a, b):
        out = []
        ia = ib = 0
        while ia < len(a) or ib < len(b):
            if ib >= len(b) or (ia < len(a) and ia * len(b) <= ib * len(a)):
                out.append(a[ia]); ia += 1
            else:
                out.append(b[ib]); ib += 1
        return out

    S = []
    for tok in spec.split():
        parts = [sum((one(t) for t in p.split(",")), []) for p in tok.split("+")]
        cur = parts[0]
        for p in parts[1:]:
            cur = mix(cur, p)
        S += cur
    assert len([t for t in S if t[0] not in ("pf", "fl")]) == 80 and len(set(S)) == len(S), (len(S), spec)
    return S


def gen(opt):
    a = Asm()
    STAMP = opt.stamp
    XPOL = [(" " + p.replace("+", " ")) if p != "-" else "" for p in opt.xpol.split(",")]
    ONT = opt.ostore
    WPOL = (" " + opt.wpol.replace("+", " ")) if opt.wpol != "-" else ""
    D = opt.depth
    NOWN = opt.nown
    PART = NOWN * 16384
    RING = PART + 32768
    NSLOT = (FLG - RING) // 8192

    SX, SW, SO, SWS, SDBG, SG, SB = 20, 24, 28, 32, 36, 40, 44
    sT, sC, sBt, sTt, sGrp, sWave, sTmp, sTmp2 = 48, 49, 50, 51, 52, 53, 54, 55
    sXb0, sXb1, sXl0, sXl1, sWb, sWl, sOff = 56, 57, 58, 59, 60, 61, 62
    sLvl = 63
    sMask3, sMaskLast, sMaskG1 = 64, 66, 68
    sSlot = 70
    sPoll = 71
    sOutB = 75
    sNv = 79
    sK = 80
    sSt = 84
    sStB = 86
    sSpin = 87
    sEx = 88
    sPc = 90
    sAny = 92
    sPub = 93
    sSent, sFlagged = 90, 91
    sPM = 4

    def srd(d, p, nbytes):
        a(f"s_mov_b32 s{d}, s{p}")
        a(f"s_and_b32 s{d+1}, s{p+1}, 0xffff")
        a(f"s_mov_b32 s{d+2}, {nbytes}")
        a(f"s_mov_b32 s{d+3}, 0x20000")

    def stamp(idx, vt0=None, vt1=None):
        if not STAMP:
            return
        a(f"s_memrealtime s[{sSt}:{sSt+1}]")
        a("s_memtime s[98:99]")
        a("s_waitcnt lgkmcnt(0)")
        a(f"v_writelane_b32 v63, s{sSt}, {2*idx}")
        a(f"v_writelane_b32 v63, s98, {2*idx+1}")

    def stamp_dump(mask):
        a(f"s_mov_b64 exec, {mask}")
        a("v_lshlrev_b32 v60, 2, v2")
        a(f"buffer_store_dword v63, v60, s[{SWS}:{SWS+3}], s{sStB} offen")
        a("s_mov_b64 exec, -1")

    trc = {"n": 0, "names": []}

    def trace(name):
        if not opt.trace:
            return
        if trc["n"] >= 128:
            return
        a("s_memtime s[100:101]")
        a("s_waitcnt lgkmcnt(0)")
        a(f"v_writelane_b32 v{62 if trc['n'] < 64 else 61}, s100, {trc['n'] % 64}")
        trc["names"].append(name)
        trc["n"] += 1

    def trace_dump(half):
        if not opt.trace:
            return
        lab = a.newlab("L_td")
        a(f"s_cmp_lg_u32 s{sWave}, 0")
        a(f"s_cbranch_scc1 {lab}")
        a(f"s_lshl_b32 s{sTmp}, s2, 10")
        a(f"s_add_u32 s{sTmp}, s{sTmp}, {0x180000 + half*512}")
        a("v_lshlrev_b32 v63, 2, v2")
        a(f"buffer_store_dword v62, v63, s[{SWS}:{SWS+3}], s{sTmp} offen")
        a(f"buffer_store_dword v61, v63, s[{SWS}:{SWS+3}], s{sTmp} offen offset:256")
        a.label(lab)
        sys.stderr.write(f"TRACE{half}: " + ",".join(trc["names"]) + "\n")
        trc["n"] = 0
        trc["names"] = []

    if STAMP:
        a("s_memrealtime s[94:95]")
        a("s_memtime s[96:97]")
    a("s_load_dwordx8 s[4:11], s[0:1], 0")
    a("s_load_dwordx4 s[12:15], s[0:1], 32")
    a("s_load_dwordx2 s[16:17], s[0:1], 48")
    a(f"s_lshr_b32 s{sTmp}, s2, 4")
    a(f"s_lshl_b32 s{sTmp}, s{sTmp}, 3")
    a(f"s_and_b32 s{sTmp2}, s2, 7")
    a(f"s_add_u32 s{sT}, s{sTmp}, s{sTmp2}")
    a(f"s_cmp_ge_u32 s{sT}, {2*NTILE}")
    a("s_cbranch_scc1 L_end")
    a("v_lshrrev_b32 v1, 6, v0")
    a("v_and_b32 v2, 63, v0")
    a(f"v_readfirstlane_b32 s{sWave}, v1")
    a(f"s_bfe_u32 s{sC}, s2, 0x10003")
    a(f"s_cmp_ge_u32 s{sT}, {NTILE}")
    a(f"s_cselect_b32 s{sBt}, 1, 0")
    a(f"s_mul_i32 s{sTmp}, s{sBt}, {NTILE}")
    a(f"s_sub_u32 s{sTt}, s{sT}, s{sTmp}")
    if opt.swap:
        a(f"s_xor_b32 s{sWave}, s{sWave}, 4")
    a(f"s_cmp_lt_u32 s{sWave}, 4")
    a("s_cbranch_scc1 L_compute")

    def common_late():
        a(f"s_lshl_b32 s{sGrp}, s{sBt}, 1")
        a(f"s_add_u32 s{sGrp}, s{sGrp}, s{sC}")
        a(f"s_cmp_eq_u32 s{sTt}, {NTILE-1}")
        a(f"s_cselect_b32 s{sNv}, {TR - (L_OUT - TR*(NTILE-1))}, 0")
        a(f"s_sub_u32 s{sNv}, {TR}, s{sNv}")
        a(f"s_lshl_b32 s{sStB}, s2, 8")
        a(f"s_add_u32 s{sStB}, s{sStB}, 0x100000")
        srd(SO, 12, OUT_BYTES)
        srd(SWS, 16, 0x200000 if STAMP else 0x48000)
        srd(SDBG, 14, 256)
        a(f"s_mul_i32 s{sTmp}, s{sBt}, {L_OUT}")
        a(f"s_mul_i32 s{sTmp2}, s{sTt}, {TR}")
        a(f"s_add_u32 s{sTmp}, s{sTmp}, s{sTmp2}")
        a(f"s_lshl_b32 s{sOutB}, s{sTmp}, 9")
        for i in range(1, 4):
            a(f"s_add_u32 s{sOutB+i}, s{sOutB}, {i*16384}")

    a(f"s_sub_u32 s{sWave}, s{sWave}, 4")
    if opt.lprio:
        a(f"s_setprio {opt.lprio}")
    a("v_lshrrev_b32 v5, 3, v2")
    a("v_lshlrev_b32 v5, 10, v5")
    a(f"s_lshl_b32 s{sTmp}, s{sWave}, 1")
    a("v_and_b32 v6, 7, v2")
    a(f"v_xor_b32 v6, s{sTmp}, v6")
    a("v_lshl_add_u32 v3, v6, 4, v5")
    a("v_xor_b32 v4, 16, v3")
    a("v_lshrrev_b32 v6, 4, v2")
    a(f"s_lshr_b32 s{sTmp}, s{sWave}, 1")
    a(f"s_lshl_b32 s{sTmp}, s{sTmp}, 2")
    a(f"v_or_b32 v7, s{sTmp}, v6")
    a("v_bfe_u32 v8, v2, 1, 3")
    a("v_xor_b32 v7, v7, v8")
    a("v_lshlrev_b32 v5, 9, v6")
    a("v_lshl_add_u32 v5, v7, 5, v5")
    a("v_and_b32 v7, 1, v2")
    a("v_lshl_add_u32 v5, v7, 4, v5")
    a(f"s_bfe_u32 s{sTmp}, s2, 0x50003")
    a(f"s_lshl_b32 s{sTmp}, s{sTmp}, 2")
    a(f"s_add_u32 s{sTmp}, s{sTmp}, s{sWave}")
    a(f"s_mul_i32 s{sTmp}, s{sTmp}, 3072")
    a("v_min_u32 v6, 47, v2")
    a(f"v_lshl_add_u32 v6, v6, 6, s{sTmp}")
    a(f"s_mul_i32 s{sXb0}, s{sBt}, {XB_BATCH}")
    a(f"s_mul_i32 s{sTmp}, s{sTt}, {TR*1024}")
    a(f"s_add_u32 s{sXb0}, s{sXb0}, s{sTmp}")
    a(f"s_lshl_b32 s{sTmp}, s{sWave}, 15")
    a(f"s_add_u32 s{sXb0}, s{sXb0}, s{sTmp}")
    a(f"s_lshl_b32 s{sTmp}, s{sC}, 9")
    a(f"s_xor_b32 s{sTmp2}, s{sTmp}, 512")
    a(f"s_add_u32 s{sXb1}, s{sXb0}, s{sTmp2}")
    a(f"s_add_u32 s{sXb0}, s{sXb0}, s{sTmp}")
    a(f"s_lshl_b32 s{sXl0}, s{sWave}, 12")
    a(f"s_add_u32 s{sXl1}, s{sXl0}, {PART}")
    a(f"s_lshl_b32 s{sWb}, s{sWave}, 11")
    a(f"s_lshl_b32 s{sTmp}, s{sC}, 8")
    a(f"s_add_u32 s{sWb}, s{sWb}, s{sTmp}")
    a(f"s_lshl_b32 s{sWl}, s{sWave}, 10")
    a(f"s_add_u32 s{sWl}, s{sWl}, {RING}")
    RX0, RX1, RW = [64, 65, 66, 67], [71, 72, 73, 74], [80, 81, 82, 83]
    for j in range(4):
        if opt.rot:
            a(f"s_lshr_b32 s{sTmp}, s2, 4")
            a(f"s_add_u32 s{sTmp}, s{sTmp}, {j}")
            a(f"s_and_b32 s{sTmp}, s{sTmp}, 3")
        else:
            a(f"s_mov_b32 s{sTmp}, {j}")
        a(f"s_lshl_b32 s{sTmp2}, s{sTmp}, 7")
        a(f"s_add_u32 s{RX0[j]}, s{sXb0}, s{sTmp2}")
        a(f"s_add_u32 s{RX1[j]}, s{sXb1}, s{sTmp2}")
        a(f"s_lshl_b32 s{sTmp2}, s{sTmp}, 15")
        a(f"s_add_u32 s{RW[j]}, s{sWb}, s{sTmp2}")
    a("s_waitcnt lgkmcnt(0)")
    if STAMP >= 2:
        stamp(8)
    srd(SX, 4, X_BYTES)
    srd(SW, 6, W_BYTES)
    trace("start")

    specs = opt.order.split("/")
    ncls = len(specs)
    if ncls > 1:
        a(f"s_and_b32 s{sTmp}, s{sT}, {ncls//2 - 1}")
        a(f"s_lshl_b32 s{sTmp}, s{sTmp}, 1")
        a(f"s_add_u32 s{sTmp}, s{sTmp}, s{sC}")
        for ci in range(1, ncls):
            a(f"s_cmp_eq_u32 s{sTmp}, {ci}")
            a(f"s_cbranch_scc1 L_cls{ci}")

    def lproto(cnt, blocking):
        lab, top, again = a.newlab("L_pt"), a.newlab("L_ptt"), a.newlab("L_pta")
        a(f"s_cmp_lg_u32 s{sFlagged}, 0")
        a(f"s_cbranch_scc1 {lab}")
        if blocking:
            a(f"s_mov_b32 s{sSpin}, 0")
        a.label(top)
        a(f"s_waitcnt vmcnt({cnt})")
        a(f"v_readfirstlane_b32 s{sTmp}, v26")
        a(f"s_cmp_eq_u32 s{sTmp}, 0")
        a(f"s_cbranch_scc1 {again}")
        a(f"s_lshl_b32 s{sTmp}, s{sGrp}, 6")
        a(f"s_add_u32 s{sTmp}, s{sTmp}, s{sTt}")
        a(f"s_lshl_b32 s{sTmp}, s{sTmp}, 7")
        a(f"s_add_u32 s{sTmp}, s{sTmp}, {RDY}")
        a("s_mov_b64 exec, 1")
        a(f"buffer_store_dwordx2 v[26:27], off, s[{SWS}:{SWS+3}], s{sTmp} sc1")
        a("s_mov_b64 exec, -1")
        a(f"s_mov_b32 s{sFlagged}, 1")
        a(f"s_branch {lab}")
        a.label(again)
        a(f"buffer_load_dwordx2 v[26:27], off, s[{SDBG}:{SDBG+3}], 0 sc1")
        if blocking:
            a(f"s_add_u32 s{sSpin}, s{sSpin}, 1")
            a(f"s_cmp_le_u32 s{sSpin}, {SPIN_MAX}")
            a(f"s_cbranch_scc1 {top}")
        a.label(lab)

    def emit_loader(spec):
        stream = build_stream(spec)
        if opt.skipdma:
            stream = [it for i, it in enumerate(stream) if i < 16 or not (
                opt.skipdma == 3 or (opt.skipdma == 1 and it[0] == "x") or (opt.skipdma == 2 and it[0] == "w"))]

        def earliest(it):
            if opt.freerun:
                return -2
            if it[0] == "w" and it[1] >= NSLOT:
                return (it[1] - NSLOT) // 3
            if it[0] == "x":
                ns = NOWN if it[1] == 0 else 2
                if it[2] >= ns:
                    return 2 * (it[2] - ns) + 2
            return -2

        def req(k):
            r = [("w", u, h) for u in range(3 * k, 3 * k + 3) for h in range(2)]
            r += [("x", wh, k // 2, qq) for wh in range(2) for qq in range(4)]
            return [it for it in r if it in stream]

        caps = [int(v) for v in opt.caps.split(",")]
        issued = []
        pos = 0

        def issue(it):
            i = len(issued)
            if it[0] == "x":
                _, wh, j, qq = it
                sb, sl = (RX0[j], sXl0) if wh == 0 else (RX1[j], sXl1)
                a(f"s_add_u32 m0, s{sl}, {((j % NOWN) if wh == 0 else (j & 1))*16384+qq*1024}")
                a(f"s_add_u32 s{sOff}, s{sb}, {qq*8192}")
                a(f"buffer_load_dwordx4 v{3+(qq>>1)}, s[{SX}:{SX+3}], s{sOff} offen{XPOL[wh]} lds")
            elif it[0] == "w":
                _, u, h = it
                k, tap = u // 3, u % 3
                a(f"s_add_u32 m0, s{sWl}, {(u%NSLOT)*8192+h*4096}")
                a(f"s_add_u32 s{sOff}, s{RW[k//2]}, {(tap*256+32*(k%2)+16*h)*512}")
                a(f"buffer_load_dwordx4 v5, s[{SW}:{SW+3}], s{sOff} offen{WPOL} lds")
            else:
                a(f"buffer_load_dword v8, v6, s[{SW}:{SW+3}], 0 offen")
            issued.append(it)

        for iv in range(-2, 7):
            nxt_req = req(iv + 2)
            cap = caps[min(iv + 2, len(caps) - 1)]
            cnt = 0
            if iv >= 0 and opt.ldelay:
                a(f"s_sleep {opt.ldelay}")
            while pos < len(stream) and earliest(stream[pos]) <= iv and (cnt < cap or any(r not in issued for r in nxt_req)):
                issue(stream[pos])
                pos += 1
                cnt += 1
                if iv == -2 and cnt == 14:
                    common_late()
                if iv == -2 and STAMP == 3 and cnt == 6:
                    stamp(9)
                    a("s_waitcnt vmcnt(5)")
                    stamp(10)
                    a("s_waitcnt vmcnt(0)")
                    stamp(11)
            if iv == -2 and STAMP == 2:
                stamp(9)
                a(f"s_waitcnt vmcnt({cnt-1})")
                stamp(10)
                a(f"s_waitcnt vmcnt({cnt-5})")
                stamp(11)
            if iv == -1:
                lab = a.newlab("L_sn")
                a(f"s_cmp_lg_u32 s{sWave}, 3")
                a(f"s_cselect_b32 s{sFlagged}, 1, 0")
                a(f"s_cbranch_scc1 {lab}")
                a(f"s_lshl_b32 s{sTmp}, s{sGrp}, 16")
                a(f"s_lshl_b32 s{sTmp2}, s{sTt}, 8")
                a(f"s_add_u32 s{sTmp}, s{sTmp}, s{sTmp2}")
                a("v_lshrrev_b32 v24, 4, v2")
                a("v_lshlrev_b32 v24, 14, v24")
                a("v_and_b32 v25, 15, v2")
                a("v_lshl_add_u32 v24, v25, 4, v24")
                for r in range(28, 32):
                    a(f"v_mov_b32 v{r}, -1")
                a(f"buffer_store_dwordx4 v[28:31], v24, s[{SWS}:{SWS+3}], s{sTmp} offen sc1")
                a(f"buffer_load_dwordx2 v[26:27], off, s[{SDBG}:{SDBG+3}], 0 sc1")
                a.label(lab)
                a("v_min_u32 v18, 62, v2")
                a(f"s_lshl_b32 s{sTmp}, s{sGrp}, 13")
                a(f"s_add_u32 s{sTmp}, s{sTmp}, {RDY}")
                a(f"v_lshl_add_u32 v18, v18, 7, s{sTmp}")
            if iv in (0, 1, 2):
                lproto(cnt, False)
            if iv == 3:
                lproto(0, True) if False else lproto(cnt, False)
            if iv == 6:
                break
            for r in nxt_req:
                assert r in issued, (iv, r)
            if nxt_req:
                last = max(issued.index(r) for r in nxt_req)
                a(f"s_waitcnt vmcnt({min(63, len(issued) - 1 - last)})")
            a("s_barrier")
        assert pos == len(stream), (pos, len(stream))

    for ci, spec in enumerate(specs):
        a.label(f"L_cls{ci}")
        emit_loader(spec)
        if ci + 1 < ncls:
            a("s_branch L_ldone")
    a.label("L_ldone")
    if STAMP:
        stamp(7)
        stamp_dump("0xffc000")
    a(f"s_cmp_lg_u32 s{sWave}, 3")
    a("s_cbranch_scc1 L_cnt_ok")
    lproto(0, True)
    a(f"s_mov_b32 s{sSpin}, 0")
    a.label("L_cnt")
    a(f"buffer_load_dwordx2 v[16:17], v18, s[{SWS}:{SWS+3}], 0 offen sc1")
    a("s_waitcnt vmcnt(0)")
    a("v_cmp_ne_u64 vcc, v[16:17], v[26:27]")
    a("s_cbranch_vccz L_cnt_ok")
    a(f"s_add_u32 s{sSpin}, s{sSpin}, 1")
    a(f"s_cmp_gt_u32 s{sSpin}, {SPIN_MAX}")
    a("s_cbranch_scc1 L_cnt_ok")
    a("s_sleep 4")
    a("s_branch L_cnt")
    a.label("L_cnt_ok")
    H = [64 + 8 * i for i in range(4)]

    def tread_setup():
        a("v_and_b32 v3, 15, v0")
        a("v_lshrrev_b32 v4, 4, v0")
        a("v_lshlrev_b32 v5, 1, v3")
        a("v_lshrrev_b32 v6, 3, v3")
        a("v_xor_b32 v5, v5, v6")
        a("v_lshlrev_b32 v5, 4, v5")
        a("v_lshl_add_u32 v5, v4, 9, v5")
        a("v_xor_b32 v6, 16, v5")
        a(f"s_lshl_b32 s{sTmp}, s{sC}, 8")
        a(f"v_lshl_add_u32 v8, v4, 9, s{sTmp}")
        a("v_lshl_add_u32 v8, v3, 4, v8")
        a("v_add_u32 v4, 96, v4")
        a(f"v_cmp_gt_u32 vcc, s{sNv}, v4")
        a("v_mov_b32 v9, 0x7ff00000")
        a("v_lshlrev_b32 v10, 5, v3")
        a("v_cndmask_b32 v9, v9, v8, vcc")
        a(f"v_add_u32 v10, {PAR}, v10")

    def tread_issue():
        for i in range(4):
            a(f"ds_read_b128 v[{H[i]}:{H[i]+3}], v5 offset:{i*16384}")
            a(f"ds_read_b128 v[{H[i]+4}:{H[i]+7}], v6 offset:{i*16384}")

    a("s_waitcnt lgkmcnt(0)")
    tread_setup()
    a("s_barrier")
    a("s_barrier")
    tread_issue()
    a("s_barrier")
    a("s_branch L_epi")

    a.label("L_compute")
    if opt.prio:
        a(f"s_setprio {opt.prio}")
    P = [64, 96]
    Q = [128, 160]
    FB = [[192 + 24 * s + 4 * i for i in range(6)] for s in range(2)]
    NAG = 4
    FA = [[8 + 8 * g, 12 + 8 * g] for g in range(NAG)]
    vA = [[[40, 41], [42, 43]], [[248, 249], [250, 251]]]
    vA0 = 252
    sAo = [[56, 57, 58, 59], [60, 61, 62, 63]]
    vB = [44, 45]
    vSl, vG, vBe = 46, 47, 48
    vT = [49, 50]
    vFl, vDn, vPar = 51, 52, 53
    vPo, vPo15 = 54, 55
    vF = 56
    vt = [240 + i for i in range(8)]

    def code_prefetch():
        lab = a.newlab("L_ncp")
        a(f"s_cmp_lg_u32 s{sWave}, 3")
        a(f"s_cbranch_scc1 {lab}")
        a(f"s_getpc_b64 s[{sPc}:{sPc+1}]")
        a.label("L_pcref")
        a(f"s_sub_u32 s{sPc}, s{sPc}, L_pcref-{NAME}_kernel")
        a(f"s_subb_u32 s{sPc+1}, s{sPc+1}, 0")
        a(f"s_bfe_u32 s{sTmp}, s2, 0x50003")
        a(f"s_mul_i32 s{sTmp}, s{sTmp}, {opt.cpf*64}")
        a(f"v_min_u32 v3, {opt.cpf-1}, v2")
        a(f"v_lshl_add_u32 v3, v3, 6, s{sTmp}")
        a(f"v_min_u32 v3, L_codeend-{NAME}_kernel-4, v3")
        a(f"global_load_dword v61, v3, s[{sPc}:{sPc+1}]")
        a.label(lab)

    if opt.cpf:
        code_prefetch()
    a("v_bfe_u32 v3, v2, 2, 2")
    a("v_and_b32 v4, 1, v2")
    a("v_lshl_add_u32 v3, v3, 1, v4")
    a("v_bfe_u32 v4, v2, 1, 1")
    a("v_lshl_add_u32 v4, v3, 4, v4")
    a("v_lshrrev_b32 v5, 4, v2")
    a("v_xor_b32 v3, v3, v5")
    a("v_lshlrev_b32 v3, 4, v3")
    a(f"v_lshl_add_u32 v{vA0}, v4, 7, v3")
    a(f"s_cmp_eq_u32 s{sC}, 0")
    for jj in range(4):
        a(f"s_mov_b32 s{sTmp}, {(jj % NOWN)*16384}")
        a(f"s_mov_b32 s{sTmp2}, {PART+(jj&1)*16384}")
        a(f"s_cselect_b32 s{sAo[0][jj]}, s{sTmp}, s{sTmp2}")
        a(f"s_cselect_b32 s{sAo[1][jj]}, s{sTmp2}, s{sTmp}")

    def set_abase(jj):
        for e in range(2):
            a(f"v_add_u32 v{vA[jj&1][e][0]}, s{sAo[e][jj]}, v{vA0}")
            a(f"v_xor_b32 v{vA[jj&1][e][1]}, 64, v{vA[jj&1][e][0]}")

    set_abase(0)
    set_abase(1)
    a("v_bfe_u32 v3, v2, 2, 2")
    a("v_lshl_add_u32 v4, v5, 3, v3")
    a("v_lshlrev_b32 v4, 8, v4")
    a("v_and_b32 v6, 1, v5")
    a("v_lshl_add_u32 v3, v6, 2, v3")
    a(f"s_lshl_b32 s{sTmp}, s{sWave}, 1")
    a(f"v_xor_b32 v3, s{sTmp}, v3")
    a("v_lshl_add_u32 v4, v3, 5, v4")
    a("v_and_b32 v3, 3, v2")
    a("v_lshl_add_u32 v4, v3, 3, v4")
    a(f"v_add_u32 v{vB[0]}, {RING}, v4")
    a(f"v_xor_b32 v{vB[1]}, 32, v{vB[0]}")
    vB2 = [253, 60]
    a(f"v_add_u32 v{vB2[0]}, 0x8000, v{vB[0]}")
    a(f"v_add_u32 v{vB2[1]}, 0x8000, v{vB[1]}")
    a("v_and_b32 v3, 15, v2")
    a(f"s_lshl_b32 s{sTmp}, s{sWave}, 5")
    a(f"v_add_u32 v3, s{sTmp}, v3")
    a("v_lshrrev_b32 v4, 2, v3")
    a("v_bfe_u32 v6, v3, 6, 1")
    a("v_xor_b32 v4, v4, v6")
    a("v_lshlrev_b32 v4, 4, v4")
    a("v_and_b32 v6, 3, v3")
    a("v_lshl_add_u32 v4, v6, 2, v4")
    a(f"v_lshl_add_u32 v{vT[0]}, v5, 14, v4")
    a(f"v_add_u32 v{vT[1]}, 64, v{vT[0]}")
    a(f"s_mov_b32 s{sMask3}, 0")
    a(f"s_mov_b32 s{sMask3+1}, 0xffff0000")
    a(f"s_mov_b32 s{sMaskLast}, 0")
    a(f"s_cmp_eq_u32 s{sTt}, {NTILE-1}")
    a(f"s_cselect_b32 s{sMaskLast+1}, s{sMask3+1}, 0")
    a(f"s_mov_b32 s{sMaskG1}, 0xffff0000")
    a(f"s_mov_b32 s{sMaskG1+1}, 0")
    a("s_waitcnt lgkmcnt(0)")
    common_late()
    a(f"s_lshl_b32 s{sSlot}, s{sGrp}, 2")
    a(f"s_add_u32 s{sSlot}, s{sSlot}, s{sWave}")
    a(f"s_lshl_b32 s{sSlot}, s{sSlot}, 14")
    a(f"s_lshl_b32 s{sTmp}, s{sTt}, 8")
    a(f"s_add_u32 s{sTmp}, s{sTmp}, s{sSlot}")
    a(f"v_lshl_add_u32 v{vSl}, v2, 2, s{sTmp}")
    sN = sAny
    a(f"s_mov_b64 s[{sN}:{sN+1}], {1 if opt.nononce else 0}")
    a(f"s_cmp_lg_u32 s{sWave}, 0")
    a("s_cbranch_scc1 L_nosent")
    a("s_cmp_lg_u32 s2, 0" if not opt.nononce else "s_cmp_eq_u32 s2, s2")
    a("s_cbranch_scc1 L_nonon")
    a(f"s_memrealtime s[{sN}:{sN+1}]")
    a("v_lshlrev_b32 v3, 6, v2")
    a("s_waitcnt lgkmcnt(0)")
    a(f"s_or_b32 s{sN}, s{sN}, 1")
    a(f"v_mov_b32 v{vt[0]}, s{sN}")
    a(f"v_mov_b32 v{vt[1]}, s{sN+1}")
    a("s_mov_b64 exec, 1")
    a(f"buffer_store_dwordx2 v[{vt[0]}:{vt[1]}], off, s[{SDBG}:{SDBG+3}], 0 sc1")
    a("s_mov_b64 exec, -1")
    a.label("L_nonon")
    a.label("L_nosent")
    a(f"s_mov_b32 s{sSent}, s{sTmp}")
    srd(SG, 8, 512)
    srd(SB, 10, 512)
    if STAMP:
        a("v_writelane_b32 v63, s94, 0")
        a("v_writelane_b32 v63, s96, 1")
    for i in range(4):
        a(f"s_add_u32 s{sPoll+i}, s{sSlot}, {i*4096}")
    a("v_and_b32 v3, 7, v2")
    a("v_lshlrev_b32 v3, 2, v3")
    a("v_lshrrev_b32 v4, 4, v2")
    a("v_add_u32 v3, v3, v4")
    a(f"s_lshl_b32 s{sTmp}, s{sWave}, 5")
    a(f"v_add_u32 v3, s{sTmp}, v3")
    a(f"v_lshlrev_b32 v{vPar}, 2, v3")
    a(f"v_add_u32 v{vPar}, {PAR}, v{vPar}")
    a(f"s_lshl_b32 s{sTmp}, s{sC}, 7")
    a(f"v_add_lshl_u32 v3, v3, s{sTmp}, 1")
    a(f"buffer_load_ushort v{vBe}, v3, s[{SB}:{SB+3}], 0 offen")
    a(f"buffer_load_ushort v{vG}, v3, s[{SG}:{SG+3}], 0 offen")
    a(f"v_lshlrev_b32 v{vPo}, 4, v2")
    a(f"v_cmp_gt_u32 vcc, 48, v2")
    a(f"v_mov_b32 v{vt[5]}, 0x7ff00000")
    a("s_nop 0")
    a(f"v_cndmask_b32 v{vPo15}, v{vt[5]}, v{vPo}, vcc")
    a(f"s_cmp_lg_u32 s{sWave}, 0")
    a(f"s_cselect_b32 s{sFlagged}, 1, 0")
    vN = 254

    def proto_start():
        lab = a.newlab("L_ps")
        a(f"s_cmp_lg_u32 s{sFlagged}, 0")
        a(f"s_cbranch_scc1 {lab}")
        a("v_lshrrev_b32 v3, 4, v2")
        a("v_lshlrev_b32 v3, 14, v3")
        a("v_and_b32 v4, 15, v2")
        a("v_lshl_add_u32 v3, v4, 4, v3")
        for r in range(4):
            a(f"v_mov_b32 v{vt[r]}, -1")
        a(f"buffer_store_dwordx4 v[{vt[0]}:{vt[3]}], v3, s[{SWS}:{SWS+3}], s{sSent} offen sc1")
        a(f"buffer_load_dwordx2 v[{vN}:{vN+1}], off, s[{SDBG}:{SDBG+3}], 0 sc1")
        a.label(lab)

    def proto_step(blocking):
        lab, top, again = a.newlab("L_pt"), a.newlab("L_ptt"), a.newlab("L_pta")
        a(f"s_cmp_lg_u32 s{sFlagged}, 0")
        a(f"s_cbranch_scc1 {lab}")
        if not blocking:
            a(f"s_getreg_b32 s{sTmp}, hwreg(HW_REG_IB_STS, 0, 4)")
            a(f"s_cmp_lg_u32 s{sTmp}, 0")
            a(f"s_cbranch_scc1 {lab}")
        else:
            a(f"s_mov_b32 s{sSpin}, 0")
        a.label(top)
        a("s_waitcnt vmcnt(0)")
        if opt.nononce:
            a(f"v_mov_b32 v{vN}, 1")
            a(f"v_mov_b32 v{vN+1}, 0")
            a("s_nop 0")
        a(f"v_readfirstlane_b32 s{sTmp}, v{vN}")
        a(f"s_cmp_eq_u32 s{sTmp}, 0")
        a(f"s_cbranch_scc1 {again}")
        a(f"v_mov_b32 v3, {NON}")
        a(f"s_lshl_b32 s{sTmp}, s{sGrp}, 6")
        a(f"s_add_u32 s{sTmp}, s{sTmp}, s{sTt}")
        a(f"s_lshl_b32 s{sTmp}, s{sTmp}, 7")
        a(f"s_add_u32 s{sTmp}, s{sTmp}, {RDY}")
        a("s_mov_b64 exec, 1")
        a(f"ds_write_b64 v3, v[{vN}:{vN+1}]")
        a(f"buffer_store_dwordx2 v[{vN}:{vN+1}], off, s[{SWS}:{SWS+3}], s{sTmp} sc1")
        a("s_mov_b64 exec, -1")
        a(f"s_mov_b32 s{sFlagged}, 1")
        a(f"s_branch {lab}")
        a.label(again)
        a(f"buffer_load_dwordx2 v[{vN}:{vN+1}], off, s[{SDBG}:{SDBG+3}], 0 sc1")
        if blocking:
            a(f"s_add_u32 s{sSpin}, s{sSpin}, 1")
            a(f"s_cmp_le_u32 s{sSpin}, {SPIN_MAX}")
            a(f"s_cbranch_scc1 {top}")
        a.label(lab)

    lds = {"n": 0, "done": -1}
    prod = {}

    def ldsop(txt, dst=None):
        if (opt.noa and txt.startswith("ds_read_b128")) or (opt.nob and txt.startswith("ds_read_b64_tr")):
            return
        if opt.nomfma and (txt.startswith("ds_read_b64_tr") or (txt.startswith("ds_read_b128") and dst != vF)):
            return
        a(txt)
        if dst is not None:
            prod[dst] = lds["n"]
        lds["n"] += 1

    def need(regs):
        if opt.nowait:
            return
        idx = max(prod[r] for r in regs)
        if idx > lds["done"]:
            cnt = lds["n"] - 1 - idx
            a(f"s_waitcnt lgkmcnt({min(cnt,15)})")
            lds["done"] = idx if cnt <= 15 else lds["n"] - 1 - 15

    def a_reads(k, mb):
        j, ks2 = k // 2, k % 2
        g = (8 * k + mb) % NAG
        out = []
        for e in range(2):
            out.append((f"ds_read_b128 v[{FA[g][e]}:{FA[g][e]+3}], v{vA[j&1][e][ks2]} offset:{mb*256}", FA[g][e]))
        return out

    def b_reads(k, tap):
        u = 3 * k + tap
        out = []
        for nb in range(2):
            d = FB[k & 1][tap * 2 + nb]
            for t in range(2):
                sl = u % NSLOT
                vb, off = (vB[nb], sl * 8192) if sl < 4 else (vB2[nb], sl * 8192 - 0x8000)
                out.append((f"ds_read_b64_tr_b16 v[{d+2*t}:{d+2*t+1}], v{vb} offset:{off+t*1024}", (d, t)))
        return out

    def check_level(lvl, prefetched):
        lab, ok = a.newlab("L_lv"), a.newlab("L_lvok")
        if prefetched:
            need([vF])
            a(f"v_min3_u32 v{vF}, v{vF}, v{vF+1}, v{vF+2}")
            a(f"v_min_u32 v{vF}, v{vF}, v{vF+3}")
            a(f"v_cmp_le_u32 vcc, {lvl}, v{vF}")
            a(f"s_cbranch_vccnz {ok}")
        a(f"s_mov_b32 s{sSpin}, 0")
        a.label(lab)
        a(f"s_add_u32 s{sSpin}, s{sSpin}, 1")
        a(f"s_cmp_gt_u32 s{sSpin}, {SPIN_MAX*8}")
        a(f"s_cbranch_scc1 {ok}")
        a(f"ds_read_b128 v[{vF}:{vF+3}], v{vFl}")
        a("s_waitcnt lgkmcnt(0)")
        a(f"v_min3_u32 v{vF}, v{vF}, v{vF+1}, v{vF+2}")
        a(f"v_min_u32 v{vF}, v{vF}, v{vF+3}")
        a(f"v_cmp_le_u32 vcc, {lvl}, v{vF}")
        a(f"s_cbranch_vccz {lab}")
        a.label(ok)
        trace(f"lv{lvl}")

    def mf(d, fa, fb, zero):
        if opt.nomfma:
            return
        c = "0" if zero else f"v[{d}:{d+3}]"
        need([fa, (fb, 0), (fb, 1)])
        if opt.fixop:
            fa, fb = 240, 244
        a(f"v_mfma_f32_16x16x32_bf16 v[{d}:{d+3}], v[{fa}:{fa+3}], v[{fb}:{fb+3}], {c}")

    def done_write(val):
        if opt.nodone:
            return
        a(f"v_mov_b32 v{vt[6]}, {val}")
        ldsop(f"ds_write_b32 v{vDn}, v{vt[6]}")

    a("s_barrier")
    stamp(1, vt[0], vt[1])
    for tap in range(3):
        for r in b_reads(0, tap):
            ldsop(*r)
        if tap == 0:
            for r in a_reads(0, 0):
                ldsop(*r)
    PD = opt.pd
    for g in range(1, PD):
        for r in a_reads(0, g):
            ldsop(*r)
    CHK = opt.chk
    BSP = opt.bsp
    assert CHK + BSP <= 8 and CHK <= 8 - PD
    for k in range(8):
        a.c(f"---- step {k}")
        fb = FB[k & 1]
        bq = []
        if k < 7:
            for tap in range(3):
                bq += [("l", r) for r in b_reads(k + 1, tap)]
        for mb in range(8):
            g = (8 * k + mb) % NAG
            E, O = FA[g]
            z = k == 0
            if opt.chain:
                seq = [(P[0] + 4 * mb, E, fb[0], z), (P[0] + 4 * mb, O, fb[2], False), (P[1] + 4 * mb, O, fb[3], z),
                       (P[1] + 4 * mb, E, fb[1], False), (Q[1] + 4 * mb, E, fb[5], z), (Q[0] + 4 * mb, E, fb[4], z)]
                gaps = [1, 3, 4, 5] if opt.chain == 2 else [0, 1, 2, 3, 4, 5]
                if opt.chain == 4:
                    pp, qq_ = P[k & 1] + 4 * mb, Q[k & 1] + 4 * mb
                    seq = [(pp, E, fb[0], k < 2), (pp, O, fb[2], False), (pp, O, fb[3], False), (pp, E, fb[1], False),
                           (qq_, E, fb[5], k < 2), (qq_, E, fb[4], False)]
                    gaps = [3, 5]
            else:
                seq = [(P[0] + 4 * mb, E, fb[0], z), (P[1] + 4 * mb, E, fb[1], z), (Q[0] + 4 * mb, E, fb[4], z),
                       (Q[1] + 4 * mb, E, fb[5], z), (P[0] + 4 * mb, O, fb[2], False), (P[1] + 4 * mb, O, fb[3], False)]
                gaps = [0, 1, 2, 3, 4, 5]
            side = []
            nx = 8 * k + mb + PD
            if nx < 64:
                side += [("l", r) for r in a_reads(nx // 8, nx % 8)]
            if k < 7 and CHK <= mb < CHK + BSP:
                left = CHK + BSP - mb
                tk = (len(bq) + left - 1) // left
                side += bq[:tk]
                bq = bq[tk:]
            if mb == 0 and k in (2, 4):
                set_abase(k // 2 + 1)
            need([E, O])
            for i in range(6):
                mf(*seq[i])
                if k < 7 and mb == CHK and i == (1 if opt.chain else 0):
                    a("s_barrier")
                if i in gaps and not (k < 7 and mb == CHK and opt.chain and i == 0):
                    rem = len([g_ for g_ in gaps if g_ >= i])
                    take = (len(side) + rem - 1) // rem
                    for _ in range(take):
                        kind, r = side.pop(0)
                        ldsop(*r)
            assert not side
    stamp(2, vt[0], vt[1])
    Zr = [vt[0], vt[2]]
    zops = [
        [f"v_mov_b32 v{vt[2*nb]}, v{Q[nb]}" for nb in range(2)],
        [],
        [f"v_permlane16_swap_b32 v{Q[nb]}, v{vt[2*nb]}" for nb in range(2)],
        [f"v_mov_b32 v{vt[2*nb+1]}, v{Q[nb]}" for nb in range(2)],
        [f"v_permlane32_swap_b32 v{Q[nb]}, v{vt[2*nb+1]}" for nb in range(2)],
        [f"v_cndmask_b32 v{vt[2*nb]}, v{vt[2*nb]}, v{vt[2*nb+1]}, s[{sMaskG1}:{sMaskG1+1}]" for nb in range(2)],
    ]
    SA = [[192, 196], [200, 204]]

    def hadd(nb, r):
        p, q = P[nb], Q[nb]
        if r < 30:
            a(f"v_pk_add_f32 v[{p+r}:{p+r+1}], v[{p+r}:{p+r+1}], v[{q+r+2}:{q+r+3}]")
            if r in (26, 28):
                a(f"v_cndmask_b32 v{p+r+1}, v{p+r+1}, 0, s[{sMaskLast}:{sMaskLast+1}]")
        else:
            a(f"v_add_f32 v{p+30}, v{p+30}, v{q+1}")
            a(f"v_add_f32 v{p+31}, v{p+31}, v{Zr[nb]}")
            a(f"v_cndmask_b32 v{p+31}, v{p+31}, 0, s[{sMask3}:{sMask3+1}]")

    def acc(nb, r):
        p = P[nb]
        s1, s2 = SA[nb]
        o = 2 * ((r >> 1) & 1)
        x = f"v[{p+r}:{p+r+1}]"
        if r < 4:
            a(f"v_pk_mul_f32 v[{s2+o}:{s2+o+1}], {x}, {x}")
        else:
            a(f"v_pk_fma_f32 v[{s2+o}:{s2+o+1}], {x}, {x}, v[{s2+o}:{s2+o+1}]")
        if r in (4, 6):
            a(f"v_pk_add_f32 v[{s1+o}:{s1+o+1}], v[{p+r-4}:{p+r-3}], {x}")
        elif r >= 8:
            a(f"v_pk_add_f32 v[{s1+o}:{s1+o+1}], v[{s1+o}:{s1+o+1}], {x}")

    for r in range(0, 36, 2):
        for nb in range(2):
            if r < 32:
                hadd(nb, r)
        for nb in range(2):
            if r >= 4:
                acc(nb, r - 4)
        if r < len(zops) * 2 and zops[r // 2]:
            for t_ in zops[r // 2]:
                a(t_)
    for nb in range(2):
        for st in range(2):
            s_ = SA[nb][st]
            a(f"v_pk_add_f32 v[{s_}:{s_+1}], v[{s_}:{s_+1}], v[{s_+2}:{s_+3}]")
    for nb in range(2):
        for st in range(2):
            s_ = SA[nb][st]
            a(f"v_add_f32 v{s_}, v{s_}, v{s_+1}")

    def reduce4(v0_, v1_, v2_, v3_):
        a("s_nop 1")
        a(f"v_permlane16_swap_b32 v{v0_}, v{v1_}")
        a(f"v_permlane16_swap_b32 v{v2_}, v{v3_}")
        a("s_nop 1")
        a(f"v_add_f32 v{v0_}, v{v0_}, v{v1_}")
        a(f"v_add_f32 v{v2_}, v{v2_}, v{v3_}")
        a("s_nop 1")
        a(f"v_permlane32_swap_b32 v{v0_}, v{v2_}")
        a("s_nop 1")
        a(f"v_add_f32 v{v0_}, v{v0_}, v{v2_}")

    reduce4(SA[0][0], SA[1][0], SA[0][1], SA[1][1])
    S1 = SA[0][0]
    a(f"v_cmp_eq_u32 vcc, -1, v{S1}")
    a(f"v_mov_b32 v{S1+1}, 0x7fc00000")
    a("s_nop 0")
    a(f"v_cndmask_b32 v{S1}, v{S1}, v{S1+1}, vcc")
    a(f"buffer_store_dword v{S1}, v{vSl}, s[{SWS}:{SWS+3}], 0 offen sc1")
    stamp(3, vt[0], vt[1])
    trace("pub")
    trace_dump(1)
    a("s_barrier")
    PL = [128 + 4 * m for m in range(16)]

    def poll_load(m):
        vo = vPo15 if m == 15 else vPo
        return f"buffer_load_dwordx4 v[{PL[m]}:{PL[m]+3}], v{vo}, s[{SWS}:{SWS+3}], s{sPoll+(m>>2)} offen offset:{(m&3)*1024} sc1"

    def t_writes():
        for nb in range(2):
            for r in range(0, 32, 2):
                o0 = (r >> 1) * 2
                a(f"ds_write2st64_b32 v{vT[nb]}, v{P[nb]+r}, v{P[nb]+r+1} offset0:{o0} offset1:{o0+32}")

    if opt.twoph:
        a(f"s_bfe_u32 s{sTmp}, s2, 0x30004")
        a(f"s_lshl_b32 s{sTmp}, s{sTmp}, 10")
        a(f"s_add_u32 s{sTmp}, s{sTmp}, s{sSlot}")
        a(f"s_add_u32 s{sTmp2}, s{sTmp}, 8192")
        a(f"buffer_load_dwordx4 v[{PL[0]}:{PL[0]+3}], v{vPo}, s[{SWS}:{SWS+3}], s{sTmp} offen sc1")
        a(f"buffer_load_dwordx4 v[{PL[1]}:{PL[1]+3}], v{vPo}, s[{SWS}:{SWS+3}], s{sTmp2} offen sc1")
        t_writes()
        tread_setup()
        a("s_waitcnt lgkmcnt(0)")
        a("s_barrier")
        tread_issue()
        if opt.twoph == 2:
            a("s_waitcnt vmcnt(0)")
        for m in range(16):
            a(poll_load(m))
    else:
        if opt.pollfirst == 1:
            for m in range(16):
                a(poll_load(m))
            t_writes()
        elif opt.pollfirst == 0:
            t_writes()
            for m in range(16):
                a(poll_load(m))
        else:
            t_writes()
        tread_setup()
        a("s_waitcnt lgkmcnt(0)")
        if opt.pollfirst == 2:
            for m in range(16):
                a(poll_load(m))
        a("s_barrier")
        if opt.pollfirst == 3:
            for m in range(16):
                a(poll_load(m))
        tread_issue()
        if opt.pollfirst == 4:
            a("s_waitcnt lgkmcnt(0)")
            for m in range(16):
                a(poll_load(m))
    PM = [4 + 2 * i for i in range(12)] + [40 + 2 * i for i in range(4)]
    a(f"s_mov_b32 s{sSpin}, 0")
    a("s_waitcnt vmcnt(0)")
    for m in range(16):
        a(f"v_max3_u32 v{vt[m&3]}, v{PL[m]}, v{PL[m]+1}, v{PL[m]+2}")
        a(f"v_max_u32 v{vt[m&3]}, v{vt[m&3]}, v{PL[m]+3}")
        a(f"v_cmp_eq_u32 s[{PM[m]}:{PM[m]+1}], -1, v{vt[m&3]}")
    a.label("L_poll")
    a(f"s_or_b64 s[{sAny}:{sAny+1}], s[{PM[0]}:{PM[0]+1}], s[{PM[1]}:{PM[1]+1}]")
    for m in range(2, 16):
        a(f"s_or_b64 s[{sAny}:{sAny+1}], s[{sAny}:{sAny+1}], s[{PM[m]}:{PM[m]+1}]")
    a("s_cbranch_scc0 L_pdone")
    a(f"s_add_u32 s{sSpin}, s{sSpin}, 1")
    a(f"s_cmp_gt_u32 s{sSpin}, {SPIN_MAX}")
    a("s_cbranch_scc1 L_pdone")
    for m in range(16):
        lab = a.newlab("L_pl")
        a(f"s_mov_b64 exec, s[{PM[m]}:{PM[m]+1}]")
        a(f"s_cbranch_execz {lab}")
        a(poll_load(m))
        a.label(lab)
    a("s_waitcnt vmcnt(0)")
    for m in range(16):
        lab = a.newlab("L_pc")
        a(f"s_mov_b64 exec, s[{PM[m]}:{PM[m]+1}]")
        a(f"s_cbranch_execz {lab}")
        a(f"v_max3_u32 v{vt[0]}, v{PL[m]}, v{PL[m]+1}, v{PL[m]+2}")
        a(f"v_max_u32 v{vt[0]}, v{vt[0]}, v{PL[m]+3}")
        a(f"v_cmp_eq_u32 s[{PM[m]}:{PM[m]+1}], -1, v{vt[0]}")
        a.label(lab)
    a("s_mov_b64 exec, -1")
    a("s_branch L_poll")
    a.label("L_pdone")
    a("s_mov_b64 exec, -1")
    stamp(4, vt[0], vt[1])
    step = 1
    while step < 16:
        for m in range(0, 16, 2 * step):
            for hh in range(2):
                d, s_ = PL[m] + 2 * hh, PL[m + step] + 2 * hh
                a(f"v_pk_add_f32 v[{d}:{d+1}], v[{d}:{d+1}], v[{s_}:{s_+1}]")
        step *= 2
    v0_, v1_, v2_, v3_ = PL[0], PL[0] + 1, PL[0] + 2, PL[0] + 3
    reduce4(v0_, v1_, v2_, v3_)
    a("s_nop 1")
    a(f"v_mov_b32_dpp v{v1_}, v{v0_} row_ror:8 row_mask:0xf bank_mask:0xf")
    c1 = -2.0 * math.sqrt(2.0 / math.pi) * math.log2(math.e)
    c2 = c1 * 0.044715
    sc = -((-c2) ** (1.0 / 3.0))
    a(f"v_mul_f32 v{v0_}, {hex(f2u(1.0/L_OUT))}, v{v0_}")
    a(f"v_mul_f32 v{v1_}, {hex(f2u(1.0/L_OUT))}, v{v1_}")
    a(f"v_fma_f32 v{v1_}, -v{v0_}, v{v0_}, v{v1_}")
    a(f"v_max_f32 v{v1_}, 0, v{v1_}")
    a(f"v_add_f32 v{v1_}, {hex(f2u(1e-5))}, v{v1_}")
    a(f"v_rsq_f32 v{v1_}, v{v1_}")
    a(f"v_lshlrev_b32 v{vG}, 16, v{vG}")
    a(f"v_lshlrev_b32 v{vBe}, 16, v{vBe}")
    a(f"v_mul_f32 v{vG}, {hex(f2u(sc))}, v{vG}")
    a(f"v_mul_f32 v{vBe}, {hex(f2u(sc))}, v{vBe}")
    a(f"v_mul_f32 v{v1_}, v{v1_}, v{vG}")
    a(f"v_fma_f32 v{v0_}, -v{v0_}, v{v1_}, v{vBe}")
    a(f"s_mov_b32 s{sTmp}, 0x00ff00ff")
    a(f"s_mov_b32 exec_lo, s{sTmp}")
    a(f"s_mov_b32 exec_hi, s{sTmp}")
    a(f"ds_write2_b32 v{vPar}, v{v1_}, v{v0_} offset0:0 offset1:128")
    a("s_mov_b64 exec, -1")
    a("s_waitcnt lgkmcnt(0)")
    a("s_barrier")

    a.label("L_epi")
    SCL, SHF = 16, 24
    a(f"ds_read_b128 v[{SCL}:{SCL+3}], v10")
    a(f"ds_read_b128 v[{SCL+4}:{SCL+7}], v10 offset:16")
    a(f"ds_read_b128 v[{SHF}:{SHF+3}], v10 offset:512")
    a(f"ds_read_b128 v[{SHF+4}:{SHF+7}], v10 offset:528")
    k1 = c1 / sc
    a(f"s_mov_b32 s{sK}, {hex(f2u(k1))}")
    a(f"s_mov_b32 s{sK+1}, {hex(f2u(k1))}")
    a(f"s_mov_b32 s{sK+2}, {hex(f2u(sc))}")
    a(f"s_mov_b32 s{sK+3}, {hex(f2u(sc))}")
    a("s_waitcnt lgkmcnt(0)")
    W_, O_ = 32, 48
    for i in range(4):
        h = H[i]
        w_ = W_ + 8 * (i & 1)
        o_ = O_ + 4 * (i & 1)
        for p in range(4):
            a(f"v_pk_fma_f32 v[{h+2*p}:{h+2*p+1}], v[{h+2*p}:{h+2*p+1}], v[{SCL+2*p}:{SCL+2*p+1}], v[{SHF+2*p}:{SHF+2*p+1}]")
        for p in range(4):
            a(f"v_pk_fma_f32 v[{w_+2*p}:{w_+2*p+1}], v[{h+2*p}:{h+2*p+1}], v[{h+2*p}:{h+2*p+1}], s[{sK}:{sK+1}]")
        for p in range(4):
            a(f"v_pk_mul_f32 v[{w_+2*p}:{w_+2*p+1}], v[{w_+2*p}:{w_+2*p+1}], v[{h+2*p}:{h+2*p+1}]")
        for e in range(8):
            a(f"v_exp_f32 v{w_+e}, v{w_+e}")
        for p in range(4):
            a(f"v_pk_fma_f32 v[{w_+2*p}:{w_+2*p+1}], v[{w_+2*p}:{w_+2*p+1}], s[{sK+2}:{sK+3}], s[{sK+2}:{sK+3}]")
        for e in range(8):
            a(f"v_rcp_f32 v{w_+e}, v{w_+e}")
        for p in range(4):
            a(f"v_pk_mul_f32 v[{w_+2*p}:{w_+2*p+1}], v[{w_+2*p}:{w_+2*p+1}], v[{h+2*p}:{h+2*p+1}]")
        for p in range(4):
            a(f"v_cvt_pk_bf16_f32 v{o_+p}, v{w_+2*p}, v{w_+2*p+1}")
        vo = 9 if i == 3 else 8
        a(f"buffer_store_dwordx4 v[{o_}:{o_+3}], v{vo}, s[{SO}:{SO+3}], s{sOutB+i} offen{ONT}")
    if STAMP:
        a("v_lshrrev_b32 v60, 6, v0")
        a(f"v_cmp_eq_u32 vcc, {max(opt.stampw,0)}, v60")
        a("s_cbranch_vccz L_end")
        stamp(5)
        a("s_waitcnt vmcnt(0)")
        stamp(6)
        stamp_dump("0x3fff")
    a.label("L_end")
    a("s_endpgm")
    a.label("L_codeend")

    hdr = open("cdna_kernels/%s.s.ref" % NAME).read().split("\n")
    head = []
    for ln in hdr:
        if ln.startswith("; @launch"):
            head.append("; @launch grid=(254,1,1) block=(512,1,1) lds=163840")
            break
        head.append(ln)
    out = "\n".join(head) + "\n"
    out += f""".amdgcn_target "amdgcn-amd-amdhsa--gfx950"
.text
.globl {NAME}_kernel
.p2align 8
.type {NAME}_kernel,@function
{NAME}_kernel:
"""
    out += a.text()
    out += f""".section .rodata,"a"
.p2align 6
.amdhsa_kernel {NAME}_kernel
  .amdhsa_next_free_vgpr 256
  .amdhsa_next_free_sgpr 102
  .amdhsa_accum_offset 256
  .amdhsa_group_segment_fixed_size 0
  .amdhsa_kernarg_size 56
  .amdhsa_user_sgpr_count 2
  .amdhsa_user_sgpr_kernarg_segment_ptr 1
  .amdhsa_system_sgpr_workgroup_id_x 1
.end_amdhsa_kernel
"""
    return out


def parse(argv=None):
    ap = argparse.ArgumentParser()
    ap.add_argument("-o", default="cdna_kernels/%s.s" % NAME)
    ap.add_argument("--stamp", type=int, default=0)
    ap.add_argument("--skipdma", type=int, default=0)
    ap.add_argument("--sleep", type=int, default=1)
    ap.add_argument("--nomfma", type=int, default=0)
    ap.add_argument("--rot", type=int, default=1)
    ap.add_argument("--freerun", type=int, default=0)
    ap.add_argument("--trace", type=int, default=0)
    ap.add_argument("--nononce", type=int, default=0)
    ap.add_argument("--xpol", default="nt,nt")
    ap.add_argument("--nown", type=int, default=4)
    ap.add_argument("--nocheck", type=int, default=0)
    ap.add_argument("--prio", type=int, default=0)
    ap.add_argument("--lprio", type=int, default=0)
    ap.add_argument("--bsp", type=int, default=5)
    ap.add_argument("--esleep", type=int, default=1)
    ap.add_argument("--stampw", type=int, default=-1)
    ap.add_argument("--fl_ahead", type=int, default=2)
    ap.add_argument("--ntry", default="16,30,44")
    ap.add_argument("--nowait", type=int, default=0)
    ap.add_argument("--nodone", type=int, default=0)
    ap.add_argument("--ldvgpr", type=int, default=0)
    ap.add_argument("--nopub", type=int, default=0)
    ap.add_argument("--noa", type=int, default=0)
    ap.add_argument("--nob", type=int, default=0)
    ap.add_argument("--fixop", type=int, default=0)
    ap.add_argument("--lregion", type=int, default=-1)
    ap.add_argument("--caps", default="20,10,12")
    ap.add_argument("--ldelay", type=int, default=0)
    ap.add_argument("--chain", type=int, default=0)
    ap.add_argument("--twoph", type=int, default=0)
    ap.add_argument("--wpol", default="-")
    ap.add_argument("--swap", type=int, default=0)
    ap.add_argument("--xnt", type=int, default=1)
    ap.add_argument("--wpf", type=int, default=1)
    ap.add_argument("--wpf_pos", type=int, default=0)
    ap.add_argument("--cpf", type=int, default=10)
    ap.add_argument("--ostore", default="sc0+sc1")
    ap.add_argument("--order", default="H0 W0 L0 P H1+W1 H2+W2 L1 H3+W3 L2 W4 W5 L3 W6 W7")
    ap.add_argument("--depth", type=int, default=6)
    ap.add_argument("--throttle", type=int, default=0)
    ap.add_argument("--pd", type=int, default=3)
    ap.add_argument("--chk", type=int, default=2)
    ap.add_argument("--pollfirst", type=int, default=1)
    o = ap.parse_args(argv)
    if o.ostore:
        o.ostore = " " + o.ostore.replace("+", " ")
    return o


if __name__ == "__main__":
    o = parse()
    open(o.o, "w").write(gen(o))
```
